```python
import torch

def _softmax(x, axis=-1):
    return torch.softmax(x, dim=axis)
def _gelu(x):
    return torch.nn.functional.gelu(x, approximate="tanh")
def _silu(x):
    return torch.nn.functional.silu(x)
def _sigmoid(x):
    return torch.sigmoid(x)
def _layernorm(x, axis=-1, eps=1e-5):
    m = x.mean(dim=axis, keepdim=True)
    v = x.var(dim=axis, keepdim=True, unbiased=False)
    return (x - m) / torch.sqrt(v + eps)
def _scatter_add(tgt, idx, src, axis=0):
    return tgt.clone().index_add_(axis, idx, src)
def _segment_sum(src, seg, n):
    out = torch.zeros((n,) + src.shape[1:], dtype=src.dtype)
    return out.index_add_(0, seg, src)
def _pad(x, pw):
    flat = tuple(v for pair in reversed(pw) for v in pair)
    return torch.nn.functional.pad(x, flat)

kernel_name = 'concat_heads__sliding_local_dilated__softmax_full_mha__prompt'

def setup_inputs():

    _w = (lambda a: (lambda t: t.to(torch.bfloat16) if t.is_floating_point() else t)(torch.as_tensor(a)))
    def _A_setup():
        B, S, D = 1, 2048, 448
        return {
            "x": _w((lambda *s: torch.randn(*s, dtype=torch.bfloat16) * 0.4)(B, S, D)),
            "wqkv": _w((lambda *s: torch.randn(*s, dtype=torch.bfloat16) * 0.8)(D, 3 * D)),
            "wo": _w((lambda *s: torch.randn(*s, dtype=torch.bfloat16) * 0.1)(D, D)),
        }
    _A_in = _A_setup()

    def _B_setup():
        B, S, D = 1, 2048, 448
        return {
            "x": _w((lambda *s: torch.randn(*s, dtype=torch.bfloat16) * 0.2)(B, S, D)),
            "wqkv": _w((lambda *s: torch.randn(*s, dtype=torch.bfloat16) * 0.8)(D, 3 * D)),
            "wo": _w((lambda *s: torch.randn(*s, dtype=torch.bfloat16) * 0.2)(D, D)),
        }
    _B_in = _B_setup()

    return {
        "A_x": _A_in["x"],
        "A_wqkv": _A_in["wqkv"],
        "A_wo": _A_in["wo"],
        "B_x": _B_in["x"],
        "B_wqkv": _B_in["wqkv"],
        "B_wo": _B_in["wo"],
    }

def reference(A_x, A_wqkv, A_wo, B_x, B_wqkv, B_wo):
    def _A_ref(x, wqkv, wo):
        B, S, D = x.shape
        H = 16; Dh = D // H
        W, dil = 8, 2
        qkv = (lambda x, *d: x.permute(*d))((x @ wqkv).reshape(B, S, 3, H, Dh), 2, 0, 3, 1, 4)
        q, k, v = qkv[0], qkv[1], qkv[2]
        scale = Dh ** -0.5
        pos = torch.arange(S)
        off = torch.arange(W) * dil
        idx = pos[:, None] - off[None, :]
        mask = idx >= 0
        idx_c = torch.where(mask, idx, 0).reshape(-1)
        kg = k[:, :, idx_c, :].reshape(B, H, S, W, Dh)
        vg = v[:, :, idx_c, :].reshape(B, H, S, W, Dh)
        logits = torch.einsum("bhsd,bhswd->bhsw", q, kg) * scale
        logits = torch.where(mask[None, None, :, :], logits, -1e9)
        attn = _softmax(logits, axis=-1)
        o = torch.einsum("bhsw,bhswd->bhsd", attn, vg)
        return (lambda x, *d: x.permute(*d))(o, 0, 2, 1, 3).reshape(B, S, D) @ wo

    def _B_ref(x, wqkv, wo):
        B, S, D = x.shape
        H = 16; Dh = D // H
        qkv = (lambda x, *d: x.permute(*d))((x @ wqkv).reshape(B, S, 3, H, Dh), 2, 0, 3, 1, 4)
        q, k, v = qkv[0], qkv[1], qkv[2]
        scale = Dh ** -0.5
        scores = torch.einsum("bhqd,bhkd->bhqk", q, k) * scale
        p = _softmax(scores, axis=-1)
        o = torch.einsum("bhqk,bhkd->bhqd", p, v)
        return (lambda x, *d: x.permute(*d))(o, 0, 2, 1, 3).reshape(B, S, D) @ wo

    a = _A_ref(A_x, A_wqkv, A_wo)
    b = _B_ref(B_x, B_wqkv, B_wo)
    return torch.concatenate([a, b], axis=-1)
```

```python
import math, struct, sys

NAME = "concat_heads__sliding_local_dilated__softmax_full_mha__prompt"

def f32bits(x):
    return struct.unpack("<I", struct.pack("<f", x))[0]

CSCALE = (28 ** -0.5) * math.log2(math.e)

QB, KVB, QA, KVA, OFA, OFB = 0x000000, 0x200000, 0x600000, 0x800000, 0xC00000, 0xE00000
WS_BYTES = 0x1000000
X_BYTES = 2048 * 448 * 2
W_BYTES = 448 * 1344 * 2
WO_BYTES = 448 * 448 * 2
OUT_BYTES = 2048 * 896 * 2
NEG_BIG = f32bits(-3.0e38)
M_OFF = 64.0


class Asm:
    def __init__(self):
        self.lines = []

    def __call__(self, s):
        for l in s.split("\n"):
            self.lines.append("    " + l.strip())

    def label(self, l):
        self.lines.append(l + ":")

    def raw(self, s):
        self.lines.append(s)

    def text(self):
        return "\n".join(self.lines) + "\n"


def vr(a, n):
    return f"v[{a}:{a+n-1}]"


def srd(a, d, ptr, nbytes):
    a(f"s_mov_b32 s{d}, s{ptr}")
    a(f"s_and_b32 s{d+1}, s{ptr+1}, 0xffff")
    a(f"s_mov_b32 s{d+2}, {nbytes:#x}")
    a(f"s_mov_b32 s{d+3}, 0x20000")


def kernel_begin(a, name):
    a.raw(".text")
    a.raw(f".globl {name}")
    a.raw(".p2align 8")
    a.raw(f".type {name},@function")
    a.label(name)


def kernel_desc(a, name, vgpr, sgpr=64):
    vg = (vgpr + 7) // 8 * 8
    a.raw('.section .rodata,"a"')
    a.raw(".p2align 6")
    a.raw(f".amdhsa_kernel {name}")
    a.raw(f"  .amdhsa_next_free_vgpr {vg}")
    a.raw(f"  .amdhsa_next_free_sgpr {sgpr}")
    a.raw(f"  .amdhsa_accum_offset {vg}")
    a.raw("  .amdhsa_group_segment_fixed_size 0")
    a.raw("  .amdhsa_kernarg_size 72")
    a.raw("  .amdhsa_user_sgpr_count 2")
    a.raw("  .amdhsa_user_sgpr_kernarg_segment_ptr 1")
    a.raw("  .amdhsa_system_sgpr_workgroup_id_x 1")
    a.raw(".end_amdhsa_kernel")


def mfma(a, d, A, B, C=None):
    c = "0" if C == 0 else vr(d if C is None else C, 16)
    a(f"v_mfma_f32_32x32x16_bf16 {vr(d,16)}, {vr(A,4)}, {vr(B,4)}, {c}")


K1_SLOT = 38912
K1_LDS = 4 * K1_SLOT


def gen_k1(a):
    name = "qkv_kernel"
    kernel_begin(a, name)
    a("s_cmp_ge_u32 s2, 256")
    a("s_cbranch_scc1 K1_END")
    a("s_load_dwordx4 s[4:7], s[0:1], 0")
    a("s_load_dwordx2 s[8:9], s[0:1], 24")
    a("s_load_dwordx2 s[10:11], s[0:1], 32")
    a("s_load_dwordx2 s[30:31], s[0:1], 64")
    a("s_and_b32 s24, s2, 1")
    a("s_bfe_u32 s25, s2, 0x10001")
    a("s_lshl_b32 s25, s25, 3")
    a("s_bfe_u32 s3, s2, 0x30003")
    a("s_add_u32 s25, s25, s3")
    a("s_bfe_u32 s26, s2, 0x10002")
    a("s_lshl_b32 s26, s26, 2")
    a("s_lshr_b32 s3, s2, 6")
    a("s_add_u32 s26, s26, s3")
    a("v_lshrrev_b32 v1, 6, v0")
    a("v_and_b32 v0, 63, v0")
    a("v_readfirstlane_b32 s27, v1")
    a("s_nop 3")
    a("s_and_b32 s28, s27, 3")
    a("s_lshr_b32 s29, s27, 2")
    a("v_lshrrev_b32 v4, 3, v0")
    a("s_lshl_b32 s3, s27, 4")
    a("v_add_u32 v4, s3, v4")
    a("v_add_u32 v5, 8, v4")
    a("v_and_b32 v6, 7, v0")
    for (rr, dst) in ((4, 2), (5, 3)):
        a(f"v_bfe_u32 v7, v{rr}, 1, 3")
        a(f"v_xor_b32 v7, v7, v6")
        a(f"v_lshlrev_b32 v{dst}, 4, v7")
    a("s_cmp_eq_u32 s24, 1")
    a("s_cbranch_scc1 K1_TOKB")
    for rr in (4, 5):
        a(f"v_and_b32 v7, 31, v{rr}")
        a(f"v_lshlrev_b32 v7, 1, v7")
        a(f"v_bfe_u32 v8, v{rr}, 5, 1")
        a(f"v_or_b32 v7, v7, v8")
        a(f"v_and_b32 v8, 64, v{rr}")
        a(f"v_or_b32 v{rr}, v7, v8")
    a.label("K1_TOKB")
    a("v_mul_u32_u24 v4, 896, v4")
    a("v_mul_u32_u24 v5, 896, v5")
    a("v_add_u32 v2, v2, v4")
    a("v_add_u32 v3, v3, v5")
    a("s_add_u32 s32, s27, 8")
    a("s_add_u32 s33, s27, 16")
    a("s_cmp_lt_u32 s27, 6")
    a("s_cselect_b32 s33, s33, s32")
    a("s_mov_b32 s34, 2979")
    for (sn, dst) in ((27, 4), (32, 5), (33, 6)):
        a(f"s_lshl_b32 s3, s{sn}, 6")
        a(f"v_add_u32 v7, s3, v0")
        a(f"v_mul_lo_u32 v8, v7, s34")
        a(f"v_lshrrev_b32 v8, 16, v8")
        a(f"v_mul_u32_u24 v9, 22, v8")
        a(f"v_sub_u32 v7, v7, v9")
        a(f"v_and_b32 v9, 0x38, v8")
        a(f"v_and_b32 v10, 1, v8")
        a(f"v_lshl_add_u32 v9, v10, 2, v9")
        a(f"v_bfe_u32 v10, v8, 1, 2")
        a(f"v_add_u32 v9, v9, v10")
        a(f"v_mul_u32_u24 v9, 2688, v9")
        a(f"v_lshl_add_u32 v{dst}, v7, 4, v9")
    a("s_waitcnt lgkmcnt(0)")
    a("s_cmp_eq_u32 s24, 1")
    a("s_cselect_b32 s4, s8, s4")
    a("s_cselect_b32 s5, s9, s5")
    a("s_cselect_b32 s6, s10, s6")
    a("s_cselect_b32 s7, s11, s7")
    srd(a, 12, 4, X_BYTES)
    srd(a, 16, 6, W_BYTES)
    srd(a, 20, 30, WS_BYTES)
    a(f"s_mul_i32 s35, s25, {128*896}")
    a("s_mul_i32 s36, s26, 336")
    a("s_lshl_b32 s37, s27, 11")
    a("s_lshl_b32 s38, s27, 10")
    a("s_lshl_b32 s39, s32, 10")
    a("s_lshl_b32 s40, s33, 10")

    def dma(c):
        slot = (c % 4) * K1_SLOT
        a(f"s_add_u32 s41, s35, {c*128}")
        a(f"s_add_u32 m0, s37, {slot}")
        a(f"s_add_u32 s42, s36, {c*64*2688}")
        a(f"buffer_load_dwordx4 v2, s[12:15], s41 offen lds")
        a(f"s_add_u32 m0, s37, {slot+1024}")
        a(f"s_nop 0")
        a(f"buffer_load_dwordx4 v3, s[12:15], s41 offen lds")
        for (sn, vv) in ((38, 4), (39, 5), (40, 6)):
            a(f"s_add_u32 m0, s{sn}, {slot+16384}")
            a(f"s_nop 0")
            a(f"buffer_load_dwordx4 v{vv}, s[16:19], s42 offen lds")

    for c in range(4):
        dma(c)
    a("v_and_b32 v16, 31, v0")
    a("s_lshl_b32 s3, s28, 5")
    a("v_add_u32 v16, s3, v16")
    a("v_bfe_u32 v17, v16, 1, 3")
    a("v_lshrrev_b32 v18, 5, v0")
    a("v_lshlrev_b32 v16, 7, v16")
    for ks in range(4):
        a(f"v_or_b32 v19, {2*ks}, v18")
        a(f"v_xor_b32 v19, v19, v17")
        a(f"v_lshl_add_u32 v{8+ks}, v19, 4, v16")
        a(f"v_add_u32 v{12+ks}, {2*K1_SLOT}, v{8+ks}")
    a("v_bfe_u32 v19, v0, 2, 2")
    a("v_lshlrev_b32 v19, 1, v19")
    a("v_lshl_add_u32 v19, v18, 3, v19")
    a("v_mul_u32_u24 v19, 352, v19")
    a("v_bfe_u32 v20, v0, 4, 1")
    a("v_lshl_add_u32 v19, v20, 5, v19")
    a("v_and_b32 v20, 3, v0")
    a("v_lshl_add_u32 v19, v20, 3, v19")
    a("s_mul_i32 s3, s29, 168")
    a("s_add_u32 s3, s3, 16384")
    a("v_add_u32 v16, s3, v19")
    a(f"v_add_u32 v17, {2*K1_SLOT}, v16")
    a("v_lshlrev_b32 v1, 4, v0")
    a("s_lshl_b32 s43, s26, 1")
    a("s_add_u32 s43, s43, s29")
    a("s_mul_i32 s44, s43, 3")
    a("s_lshl_b32 s45, s25, 2")
    a("s_add_u32 s45, s45, s28")
    a("s_and_b32 s3, s28, 1")
    a("s_lshl_b32 s3, s3, 5")
    a("s_lshl_b32 s46, s25, 1")
    a("s_add_u32 s3, s3, s46")
    a("s_lshr_b32 s46, s28, 1")
    a("s_add_u32 s3, s3, s46")
    a("s_cmp_eq_u32 s24, 1")
    a("s_cselect_b32 s45, s45, s3")
    a(f"s_cselect_b32 s46, {QB:#x}, {QA:#x}" if False else f"s_mov_b32 s46, {QA:#x}")
    a(f"s_mov_b32 s47, {KVA:#x}")
    a("s_cbranch_scc0 K1_BASEA")
    a(f"s_mov_b32 s46, {QB:#x}")
    a(f"s_mov_b32 s47, {KVB:#x}")
    a.label("K1_BASEA")
    a("s_cmp_lt_u32 s43, 10")
    a("s_cbranch_scc1 K1_V0")
    a("s_cmp_eq_u32 s43, 10")
    a("s_cbranch_scc1 K1_V1")
    a("s_branch K1_V2")

    XF = [24, 28]
    WF = [32, 44]
    ACC = [64, 80, 96]

    def reads(c, ks, buf):
        slot = c % 4
        hi = slot >= 2
        so = (slot % 2) * K1_SLOT
        xa = (12 if hi else 8) + ks
        wa = 17 if hi else 16
        a(f"ds_read_b128 {vr(XF[buf],4)}, v{xa} offset:{so}")
        for i in range(3):
            for t in range(2):
                off = so + (16 * ks + t) * 352 + i * 56
                a(f"ds_read_b64_tr_b16 {vr(WF[buf]+4*i+2*t,2)}, v{wa} offset:{off}")

    def mfmas(types, buf, first):
        for i in range(3):
            C = 0 if first else None
            if types[i] == 'T':
                mfma(a, ACC[i], WF[buf] + 4 * i, XF[buf], C)
            else:
                mfma(a, ACC[i], XF[buf], WF[buf] + 4 * i, C)

    for vi, types in enumerate(("TTT", "TTN", "NNN")):
        a.label(f"K1_V{vi}")
        a("s_waitcnt vmcnt(15)")
        a("s_barrier")
        reads(0, 0, 0)
        for c in range(7):
            for ks in range(3):
                reads(c, ks + 1, (ks + 1) % 2)
                a("s_waitcnt lgkmcnt(7)")
                mfmas(types, ks % 2, c == 0 and ks == 0)
            if c < 6:
                n = {0: 10, 1: 10, 2: 10, 3: 10, 4: 5, 5: 0}[c]
                a(f"s_waitcnt vmcnt({n}) lgkmcnt(0)")
                a("s_barrier")
                if c + 4 <= 6:
                    dma(c + 4)
                reads(c + 1, 0, 0)
            else:
                a("s_waitcnt lgkmcnt(0)")
            mfmas(types, 1, False)
        a("s_nop 15")
        for i in range(3):
            A = ACC[i]
            a(f"s_add_u32 s48, s44, {i}")
            a("s_lshr_b32 s49, s48, 4")
            a("s_and_b32 s48, s48, 15")
            a("s_lshl_b32 s48, s48, 6")
            a("s_add_u32 s48, s48, s45")
            P = 24
            if types[i] == 'T':
                a("s_lshl_b32 s50, s48, 11")
                a("s_add_u32 s50, s50, s46")
                a("s_lshl_b32 s51, s48, 12")
                a("s_add_u32 s51, s51, s47")
                a(f"s_mov_b32 s52, {f32bits(CSCALE):#x}")
                a("s_cmp_eq_u32 s49, 0")
                a("s_cselect_b32 s50, s50, s51")
                a("s_cselect_b32 s52, s52, 1.0")
                for r in range(16):
                    a(f"v_mul_f32 v{A+r}, s52, v{A+r}")
                for j in range(8):
                    a(f"v_cvt_pk_bf16_f32 v{P+j}, v{A+2*j}, v{A+2*j+1}")
                a("s_mov_b32 exec_lo, 0")
                a(f"v_mov_b32 v{P+6}, 0")
                a(f"v_mov_b32 v{P+7}, 0")
                a("s_mov_b32 exec_lo, -1")
            else:
                a("s_lshl_b32 s50, s48, 12")
                a("s_add_u32 s50, s50, s47")
                a("s_add_u32 s50, s50, 2048")
                for j in range(8):
                    a(f"v_cvt_pk_bf16_f32 v{P+j}, v{A+2*j}, v{A+2*j+1}")
                a("s_mov_b32 exec_lo, 0xe0000000")
                a("s_mov_b32 exec_hi, 0xe0000000")
                for j in range(8):
                    a(f"v_mov_b32 v{P+j}, 0")
                a("s_mov_b32 exec_lo, 0x10000000")
                a("s_mov_b32 exec_hi, 0x10000000")
                for j in range(8):
                    a(f"v_mov_b32 v{P+j}, 0x3f803f80")
                a("s_mov_b64 exec, -1")
            a(f"buffer_store_dwordx4 {vr(P,4)}, v1, s[20:23], s50 offen")
            a(f"buffer_store_dwordx4 {vr(P+4,4)}, v1, s[20:23], s50 offen offset:1024")
            a("s_nop 1")
        a("s_endpgm")
    a.label("K1_END")
    a("s_endpgm")
    kernel_desc(a, name, 112)


K2_LDS = 4 * 32768


def max16(a, dst, S, extra=()):
    regs = [S + r for r in range(16)] + list(extra)
    a(f"v_max3_f32 v{dst}, v{regs[0]}, v{regs[1]}, v{regs[2]}")
    k = 3
    while k + 1 < len(regs):
        a(f"v_max3_f32 v{dst}, v{dst}, v{regs[k]}, v{regs[k+1]}")
        k += 2
    if k < len(regs):
        a(f"v_max_f32 v{dst}, v{dst}, v{regs[k]}")


def xhalf_max(a, m, t):
    a(f"v_mov_b32 v{t}, v{m}")
    a("s_nop 1")
    a(f"v_permlane32_swap_b32 v{m}, v{t}")
    a("s_nop 1")
    a(f"v_max_f32 v{m}, v{m}, v{t}")


def gen_k2(a):
    name = "attn_kernel"
    kernel_begin(a, name)
    a("s_cmp_ge_u32 s2, 256")
    a("s_cbranch_scc1 K2_END")
    a("s_load_dwordx2 s[30:31], s[0:1], 64")
    a("s_and_b32 s24, s2, 15")
    a("s_lshr_b32 s25, s2, 4")
    a("v_lshrrev_b32 v1, 6, v0")
    a("v_and_b32 v0, 63, v0")
    a("v_readfirstlane_b32 s27, v1")
    a("v_lshlrev_b32 v1, 4, v0")
    a("s_nop 2")
    a("s_and_b32 s28, s27, 3")
    a("s_lshr_b32 s29, s27, 2")
    a("s_lshl_b32 s26, s25, 2")
    a("s_add_u32 s26, s26, s28")
    a("s_lshl_b32 s32, s24, 18")
    a(f"s_add_u32 s32, s32, {KVB:#x}")
    a("s_lshl_b32 s33, s27, 12")
    a("s_add_u32 s34, s32, s33")
    a("s_waitcnt lgkmcnt(0)")
    srd(a, 20, 30, WS_BYTES)

    Q0, Q1 = 4, 8
    KF = 12
    VF = 20
    P = 28
    O = 48
    CM = 64
    SA, SB = 80, 96
    VCUR, VNXT = 2, 3
    T0, T1 = 36, 37

    AQ, AKC, AVC, AKP, AVP = 112, 120, 128, 136, 144
    a("s_cmp_ge_u32 s27, 4")
    a("s_cbranch_scc1 K2_NOA1")
    a("s_lshl_b32 s36, s2, 2")
    a("s_add_u32 s36, s36, s27")
    a("s_and_b32 s37, s36, 15")
    a("s_lshr_b32 s38, s36, 4")
    a("s_and_b32 s39, s38, 31")
    a("s_lshl_b32 s40, s37, 6")
    a("s_add_u32 s40, s40, s38")
    a("s_lshl_b32 s41, s40, 11")
    a(f"s_add_u32 s41, s41, {QA:#x}")
    a("s_lshl_b32 s42, s40, 12")
    a(f"s_add_u32 s42, s42, {KVA:#x}")
    a("s_sub_u32 s43, s42, 4096")
    a("s_cmp_eq_u32 s39, 0")
    a("s_cselect_b32 s43, s42, s43")
    a(f"buffer_load_dwordx4 {vr(AQ,4)}, v1, s[20:23], s41 offen")
    a(f"buffer_load_dwordx4 {vr(AQ+4,4)}, v1, s[20:23], s41 offen offset:1024")
    a(f"buffer_load_dwordx4 {vr(AKC,4)}, v1, s[20:23], s42 offen")
    a(f"buffer_load_dwordx4 {vr(AKC+4,4)}, v1, s[20:23], s42 offen offset:1024")
    a(f"buffer_load_dwordx4 {vr(AKP,4)}, v1, s[20:23], s43 offen")
    a(f"buffer_load_dwordx4 {vr(AKP+4,4)}, v1, s[20:23], s43 offen offset:1024")
    a(f"buffer_load_dwordx4 {vr(AVC,4)}, v1, s[20:23], s42 offen offset:2048")
    a(f"buffer_load_dwordx4 {vr(AVC+4,4)}, v1, s[20:23], s42 offen offset:3072")
    a(f"buffer_load_dwordx4 {vr(AVP,4)}, v1, s[20:23], s43 offen offset:3072")
    a.label("K2_NOA1")

    a("s_lshl_b32 s35, s24, 6")
    a("s_add_u32 s35, s35, s26")
    a("s_lshl_b32 s35, s35, 11")
    a(f"s_add_u32 s35, s35, {QB:#x}" if QB else "s_nop 0")
    a(f"buffer_load_dwordx4 {vr(Q0,4)}, v1, s[20:23], s35 offen")
    a(f"buffer_load_dwordx4 {vr(Q1,4)}, v1, s[20:23], s35 offen offset:1024")

    def dma_static(c):
        a(f"s_add_u32 s44, s34, {c*32768}")
        a(f"s_add_u32 m0, s33, {(c%4)*32768}")
        a("s_nop 0")
        for i in range(4):
            a(f"buffer_load_dwordx4 v1, s[20:23], s44 offen offset:{i*1024} lds")

    for c in range(4):
        dma_static(c)

    a("s_cmp_ge_u32 s27, 4")
    a("s_cbranch_scc1 K2_NOA2")
    CC, CP = SA, SB
    a(f"s_mov_b32 s45, {NEG_BIG:#x}")
    for r in range(16):
        a(f"v_mov_b32 v{CC+r}, s45")
    for r in range(16):
        a(f"v_mov_b32 v{CP+r}, s45")
    for r in range(16):
        c = (r & 3) + 8 * (r >> 2)
        lo = (0xFF << c) & 0xFFFFFFFF
        hi = (0xFF << (c + 4)) & 0xFFFFFFFF
        a(f"s_mov_b32 exec_lo, {lo:#x}")
        a(f"s_mov_b32 exec_hi, {hi:#x}")
        a(f"v_mov_b32 v{CC+r}, 0")
    a("s_cmp_eq_u32 s39, 0")
    a("s_cbranch_scc1 K2_A_NOPREV")
    for r in range(12, 16):
        lo = (1 << (r & 3)) - 1
        hi = (1 << ((r & 3) + 4)) - 1
        a(f"s_mov_b32 exec_lo, {lo:#x}")
        a(f"s_mov_b32 exec_hi, {hi:#x}")
        a(f"v_mov_b32 v{CP+r}, 0")
    a.label("K2_A_NOPREV")
    a("s_mov_b64 exec, -1")
    a("s_waitcnt vmcnt(21)")
    mfma(a, CC, AKC, AQ)
    mfma(a, CP, AKP, AQ)
    mfma(a, CC, AKC + 4, AQ + 4)
    mfma(a, CP, AKP + 4, AQ + 4)
    a("s_nop 15")
    a("s_nop 3")
    max16(a, T0, CC, extra=[CP + 12, CP + 13, CP + 14, CP + 15])
    xhalf_max(a, T0, T1)
    for r in list(range(CC, CC + 16)) + list(range(CP + 12, CP + 16)):
        a(f"v_sub_f32 v{r}, v{r}, v{T0}")
    for r in list(range(CC, CC + 16)) + list(range(CP + 12, CP + 16)):
        a(f"v_exp_f32 v{r}, v{r}")
    a("s_nop 0")
    for j in range(8):
        a(f"v_cvt_pk_bf16_f32 v{P+j}, v{CC+2*j}, v{CC+2*j+1}")
    PP = KF
    a(f"v_mov_b32 v{PP}, 0")
    a(f"v_mov_b32 v{PP+1}, 0")
    a(f"v_cvt_pk_bf16_f32 v{PP+2}, v{CP+12}, v{CP+13}")
    a(f"v_cvt_pk_bf16_f32 v{PP+3}, v{CP+14}, v{CP+15}")
    a("s_waitcnt vmcnt(18)")
    mfma(a, O, AVC, P, 0)
    mfma(a, O, AVC + 4, P + 4)
    mfma(a, O, AVP, PP)
    a("s_nop 15")
    a("s_nop 3")
    a(f"v_mov_b32 v{T0}, v{O+12}")
    a(f"v_mov_b32 v{T1}, v{O+12}")
    a("s_nop 1")
    a(f"v_permlane32_swap_b32 v{T0}, v{T1}")
    a("s_nop 1")
    a(f"v_rcp_f32 v{T1}, v{T1}")
    a("s_nop 0")
    for r in range(16):
        a(f"v_mul_f32 v{O+r}, v{O+r}, v{T1}")
    for j in range(8):
        a(f"v_cvt_pk_bf16_f32 v{P+j}, v{O+2*j}, v{O+2*j+1}")
    a("s_mov_b32 exec_lo, 0")
    a(f"v_mov_b32 v{P+6}, 0")
    a(f"v_mov_b32 v{P+7}, 0")
    a("s_mov_b32 exec_lo, -1")
    a("s_lshl_b32 s41, s38, 4")
    a("s_add_u32 s41, s41, s37")
    a("s_lshl_b32 s41, s41, 11")
    a(f"s_add_u32 s41, s41, {OFA:#x}")
    a(f"buffer_store_dwordx4 {vr(P,4)}, v1, s[20:23], s41 offen")
    a(f"buffer_store_dwordx4 {vr(P+4,4)}, v1, s[20:23], s41 offen offset:1024")
    a("s_waitcnt vmcnt(14)")
    a("s_branch K2_JOIN")
    a.label("K2_NOA2")
    a("s_waitcnt vmcnt(12)")
    a.label("K2_JOIN")
    a("s_barrier")
    a(f"ds_read_b128 {vr(KF,4)}, v1")
    a(f"ds_read_b128 {vr(KF+4,4)}, v1 offset:1024")
    a("s_lshl_b32 s36, s29, 14")
    a(f"v_add_u32 v{VCUR}, s36, v1")
    a(f"v_add_u32 v{VNXT}, 0x8000, v{VCUR}")
    a("s_waitcnt lgkmcnt(0)")
    mfma(a, SB, KF, Q0, 0)
    mfma(a, SB, KF + 4, Q1)
    a(f"ds_read_b128 {vr(KF,4)}, v{VCUR}")
    a(f"ds_read_b128 {vr(KF+4,4)}, v{VCUR} offset:1024")
    for r in range(16):
        a(f"v_mov_b32 v{O+r}, 0")
    a("s_nop 3")
    max16(a, T0, SB)
    xhalf_max(a, T0, T1)
    a(f"v_add_f32 v{T0}, {f32bits(M_OFF):#x}, v{T0}")
    for r in range(16):
        a(f"v_sub_f32 v{CM+r}, 0, v{T0}")
    a("s_waitcnt lgkmcnt(0)")
    a("s_nop 0")
    mfma(a, SA, KF, Q0, CM)
    mfma(a, SA, KF + 4, Q1)
    a(f"ds_read_b128 {vr(KF,4)}, v{VCUR} offset:4096")
    a(f"ds_read_b128 {vr(KF+4,4)}, v{VCUR} offset:5120")
    a(f"ds_read_b128 {vr(VF,4)}, v{VCUR} offset:2048")
    a(f"ds_read_b128 {vr(VF+4,4)}, v{VCUR} offset:3072")
    a("s_mov_b32 s36, 0")
    a("s_nop 15")

    def step(j, s_cur, s_nxt):
        if j == 2:
            a("s_cmp_lt_u32 s36, 6")
            a("s_cbranch_scc1 K2_W4")
            a("s_waitcnt vmcnt(0)")
            a.label("K2_W4")
            a("s_waitcnt vmcnt(4)")
            a("s_barrier")
            a("s_sub_u32 s37, s36, 1")
            a("s_cmp_gt_u32 s37, 3")
            a("s_cbranch_scc1 K2_NODMA")
            a("s_add_u32 s37, s36, 3")
            a("s_lshl_b32 s38, s37, 15")
            a("s_add_u32 s44, s34, s38")
            a("s_and_b32 s38, s38, 0x18000")
            a("s_add_u32 m0, s33, s38")
            a("s_nop 0")
            for i in range(4):
                a(f"buffer_load_dwordx4 v1, s[20:23], s44 offen offset:{i*1024} lds")
            a.label("K2_NODMA")
        a("s_waitcnt lgkmcnt(2)")
        mfma(a, s_nxt, KF, Q0, CM)
        for r in range(0, 4):
            a(f"v_exp_f32 v{s_cur+r}, v{s_cur+r}")
        mfma(a, s_nxt, KF + 4, Q1)
        kb, ko = (VCUR, (j + 2) * 4096) if j + 2 < 4 else (VNXT, (j + 2 - 4) * 4096)
        for r in range(4, 8):
            a(f"v_exp_f32 v{s_cur+r}, v{s_cur+r}")
        a(f"ds_read_b128 {vr(KF,4)}, v{kb} offset:{ko}")
        a(f"ds_read_b128 {vr(KF+4,4)}, v{kb} offset:{ko+1024}")
        for q in range(4):
            a(f"v_cvt_pk_bf16_f32 v{P+q}, v{s_cur+2*q}, v{s_cur+2*q+1}")
        for r in range(8, 12):
            a(f"v_exp_f32 v{s_cur+r}, v{s_cur+r}")
        a("s_waitcnt lgkmcnt(2)")
        mfma(a, O, VF, P)
        for r in range(12, 16):
            a(f"v_exp_f32 v{s_cur+r}, v{s_cur+r}")
        vb, vo = (VCUR, (j + 1) * 4096 + 2048) if j + 1 < 4 else (VNXT, 2048)
        a(f"ds_read_b128 {vr(VF,4)}, v{vb} offset:{vo}")
        for q in range(4, 8):
            a(f"v_cvt_pk_bf16_f32 v{P+q}, v{s_cur+2*q}, v{s_cur+2*q+1}")
        a("s_nop 1")
        mfma(a, O, VF + 4, P + 4)
        a(f"ds_read_b128 {vr(VF+4,4)}, v{vb} offset:{vo+1024}")

    a.label("K2_LOOP")
    step(0, SA, SB)
    step(1, SB, SA)
    step(2, SA, SB)
    step(3, SB, SA)
    a(f"v_mov_b32 v{VCUR}, v{VNXT}")
    a(f"v_add_u32 v{VNXT}, 0x8000, v{VNXT}")
    a(f"v_and_b32 v{VNXT}, 0x1ffff, v{VNXT}")
    a("s_add_u32 s36, s36, 1")
    a("s_cmp_lt_u32 s36, 8")
    a("s_cbranch_scc1 K2_LOOP")

    a("s_waitcnt lgkmcnt(0)")
    a("s_barrier")
    a("s_nop 15")
    a("s_lshl_b32 s36, s28, 13")
    a(f"v_add_u32 v{VCUR}, s36, v1")
    a(f"v_lshrrev_b32 v{VNXT}, 2, v{VCUR}")
    a(f"v_add_u32 v{VNXT}, 0x10000, v{VNXT}")
    a("s_cmp_eq_u32 s29, 1")
    a("s_cbranch_scc1 K2_G1")
    a(f"ds_write_b128 v{VCUR}, {vr(O+8,4)}")
    a(f"ds_write_b128 v{VCUR}, {vr(O+12,4)} offset:1024")
    a("s_waitcnt lgkmcnt(0)")
    a("s_barrier")
    a(f"ds_read_b128 {vr(SA,4)}, v{VCUR} offset:2048")
    a(f"ds_read_b128 {vr(SA+4,4)}, v{VCUR} offset:3072")
    a(f"ds_read_b32 v{T0}, v{VNXT}")
    a("s_waitcnt lgkmcnt(0)")
    a(f"v_add_f32 v{T0}, v{T0}, v{O+12}")
    for r in range(8):
        a(f"v_add_f32 v{SA+r}, v{SA+r}, v{O+r}")
    a("s_branch K2_FIN")
    a.label("K2_G1")
    a(f"ds_write_b128 v{VCUR}, {vr(O,4)} offset:2048")
    a(f"ds_write_b128 v{VCUR}, {vr(O+4,4)} offset:3072")
    a(f"ds_write_b32 v{VNXT}, v{O+12}")
    a("s_waitcnt lgkmcnt(0)")
    a("s_barrier")
    a(f"ds_read_b128 {vr(SA,4)}, v{VCUR}")
    a(f"ds_read_b128 {vr(SA+4,4)}, v{VCUR} offset:1024")
    a("s_waitcnt lgkmcnt(0)")
    for r in range(8):
        a(f"v_add_f32 v{SA+r}, v{SA+r}, v{O+8+r}")
    a(f"v_mov_b32 v{T0}, v{SA+4}")
    a.label("K2_FIN")
    a(f"v_mov_b32 v{T1}, v{T0}")
    a("s_nop 1")
    a(f"v_permlane32_swap_b32 v{T0}, v{T1}")
    a("s_nop 1")
    a(f"v_mul_f32 v{T0}, 0, v{T1}")
    for r in range(8):
        a(f"v_fma_f32 v{T0}, v{SA+r}, 0, v{T0}")
    a(f"v_cmp_u_f32 vcc, v{T0}, v{T0}")
    a("s_nop 4")
    a("s_cbranch_vccnz K2_FALLBACK")
    a.label("K2_STORE")
    a(f"v_rcp_f32 v{T1}, v{T1}")
    a("s_nop 0")
    for r in range(8):
        a(f"v_mul_f32 v{SA+r}, v{SA+r}, v{T1}")
    for j in range(4):
        a(f"v_cvt_pk_bf16_f32 v{P+j}, v{SA+2*j}, v{SA+2*j+1}")
    a("s_cmp_eq_u32 s29, 0")
    a("s_cbranch_scc1 K2_NOPAD")
    a("s_mov_b32 exec_lo, 0")
    a(f"v_mov_b32 v{P+2}, 0")
    a(f"v_mov_b32 v{P+3}, 0")
    a("s_mov_b32 exec_lo, -1")
    a.label("K2_NOPAD")
    a("s_lshl_b32 s41, s26, 4")
    a("s_add_u32 s41, s41, s24")
    a("s_lshl_b32 s41, s41, 1")
    a("s_add_u32 s41, s41, s29")
    a("s_lshl_b32 s41, s41, 10")
    a(f"s_add_u32 s41, s41, {OFB:#x}")
    a(f"buffer_store_dwordx4 {vr(P,4)}, v1, s[20:23], s41 offen")
    a.label("K2_END")
    a("s_endpgm")

    a.label("K2_FALLBACK")
    a(f"s_mov_b32 s45, {NEG_BIG:#x}")
    a(f"v_mov_b32 v{T0}, s45")
    a("s_mov_b32 s36, 0")
    a("s_mov_b32 s37, s32")
    a.label("K2_FB1")
    a(f"buffer_load_dwordx4 {vr(KF,4)}, v1, s[20:23], s37 offen")
    a(f"buffer_load_dwordx4 {vr(KF+4,4)}, v1, s[20:23], s37 offen offset:1024")
    a("s_waitcnt vmcnt(0)")
    mfma(a, SB, KF, Q0, 0)
    mfma(a, SB, KF + 4, Q1)
    a("s_nop 15")
    a("s_nop 3")
    max16(a, T1, SB, extra=[T0])
    a(f"v_mov_b32 v{T0}, v{T1}")
    a("s_add_u32 s37, s37, 4096")
    a("s_add_u32 s36, s36, 1")
    a("s_cmp_lt_u32 s36, 64")
    a("s_cbranch_scc1 K2_FB1")
    xhalf_max(a, T0, T1)
    for r in range(16):
        a(f"v_sub_f32 v{CM+r}, 0, v{T0}")
    for r in range(16):
        a(f"v_mov_b32 v{O+r}, 0")
    a("s_mov_b32 s36, 0")
    a("s_mov_b32 s37, s32")
    a.label("K2_FB2")
    a(f"buffer_load_dwordx4 {vr(KF,4)}, v1, s[20:23], s37 offen")
    a(f"buffer_load_dwordx4 {vr(KF+4,4)}, v1, s[20:23], s37 offen offset:1024")
    a(f"buffer_load_dwordx4 {vr(VF,4)}, v1, s[20:23], s37 offen offset:2048")
    a(f"buffer_load_dwordx4 {vr(VF+4,4)}, v1, s[20:23], s37 offen offset:3072")
    a("s_waitcnt vmcnt(0)")
    mfma(a, SB, KF, Q0, CM)
    mfma(a, SB, KF + 4, Q1)
    a("s_nop 15")
    a("s_nop 3")
    for r in range(16):
        a(f"v_exp_f32 v{SB+r}, v{SB+r}")
    a("s_nop 0")
    for q in range(8):
        a(f"v_cvt_pk_bf16_f32 v{P+q}, v{SB+2*q}, v{SB+2*q+1}")
    a("s_nop 1")
    mfma(a, O, VF, P)
    mfma(a, O, VF + 4, P + 4)
    a("s_add_u32 s37, s37, 4096")
    a("s_add_u32 s36, s36, 1")
    a("s_cmp_lt_u32 s36, 64")
    a("s_cbranch_scc1 K2_FB2")
    a("s_nop 15")
    a("s_nop 3")
    a(f"v_mov_b32 v{T0}, v{O+12}")
    a(f"v_mov_b32 v{T1}, v{O+12}")
    a("s_nop 1")
    a(f"v_permlane32_swap_b32 v{T0}, v{T1}")
    a("s_cmp_eq_u32 s29, 0")
    a("s_cbranch_scc1 K2_FB3")
    for r in range(8):
        a(f"v_mov_b32 v{O+r}, v{O+8+r}")
    a.label("K2_FB3")
    for r in range(8):
        a(f"v_mov_b32 v{SA+r}, v{O+r}")
    a("s_branch K2_STORE")
    kernel_desc(a, name, 148)


K3_LDS = 65536 + 8 * 4096


def gen_k3(a):
    name = "proj_kernel"
    kernel_begin(a, name)
    a("s_cmp_ge_u32 s2, 224")
    a("s_cbranch_scc1 K3_END")
    a("s_load_dwordx2 s[4:5], s[0:1], 16")
    a("s_load_dwordx2 s[6:7], s[0:1], 40")
    a("s_load_dwordx2 s[8:9], s[0:1], 48")
    a("s_load_dwordx2 s[30:31], s[0:1], 64")
    a("s_and_b32 s24, s2, 1")
    a("s_bfe_u32 s25, s2, 0x20001")
    a("s_lshl_b32 s25, s25, 2")
    a("s_bfe_u32 s3, s2, 0x20003")
    a("s_add_u32 s25, s25, s3")
    a("s_lshr_b32 s26, s2, 5")
    a("v_lshrrev_b32 v1, 6, v0")
    a("v_and_b32 v0, 63, v0")
    a("v_readfirstlane_b32 s27, v1")
    a("v_lshlrev_b32 v1, 4, v0")
    a("s_nop 2")
    a("s_and_b32 s28, s27, 3")
    a("s_lshr_b32 s29, s27, 2")
    a("s_lshl_b32 s32, s25, 2")
    a("s_add_u32 s32, s32, s28")
    a("s_lshl_b32 s33, s32, 15")
    a("s_lshl_b32 s3, s29, 14")
    a("s_add_u32 s33, s33, s3")
    a(f"s_mov_b32 s34, {OFA:#x}")
    a("s_cmp_eq_u32 s24, 1")
    a(f"s_cselect_b32 s34, {OFB:#x}, s34")
    a("s_add_u32 s33, s33, s34")
    a("v_lshrrev_b32 v2, 3, v0")
    a("v_mul_u32_u24 v2, 896, v2")
    a("v_and_b32 v3, 7, v0")
    a("v_bfe_u32 v4, v0, 4, 1")
    a("v_lshlrev_b32 v4, 2, v4")
    a("v_xor_b32 v3, v3, v4")
    a("v_lshl_add_u32 v2, v3, 4, v2")
    a("s_waitcnt lgkmcnt(0)")
    a("s_cmp_eq_u32 s24, 1")
    a("s_cselect_b32 s4, s6, s4")
    a("s_cselect_b32 s5, s7, s5")
    srd(a, 12, 4, WO_BYTES)
    srd(a, 16, 8, OUT_BYTES)
    srd(a, 20, 30, WS_BYTES)
    a(f"s_mul_i32 s35, s27, {8*896}")
    a("s_lshl_b32 s3, s26, 7")
    a("s_add_u32 s35, s35, s3")
    a("s_lshl_b32 s36, s27, 10")
    for i in range(8):
        a(f"s_add_u32 s37, s35, {i*64*896}")
        a(f"s_add_u32 m0, s36, {i*8192}")
        a("s_nop 0")
        a(f"buffer_load_dwordx4 v2, s[12:15], s37 offen lds")
    OFR = 32
    for i in range(16):
        if i % 4 == 0:
            a(f"s_add_u32 s37, s33, {i*1024}")
        a(f"buffer_load_dwordx4 {vr(OFR+4*i,4)}, v1, s[20:23], s37 offen offset:{(i%4)*1024}")
    a("v_lshrrev_b32 v6, 5, v0")
    a("v_bfe_u32 v7, v0, 2, 2")
    a("v_lshl_add_u32 v6, v6, 2, v7")
    a("v_lshlrev_b32 v6, 7, v6")
    a("v_bfe_u32 v7, v0, 4, 1")
    a("v_lshl_add_u32 v6, v7, 5, v6")
    a("v_and_b32 v7, 3, v0")
    a("v_lshl_add_u32 v6, v7, 3, v6")
    a("v_bfe_u32 v7, v0, 3, 1")
    a("v_lshl_add_u32 v4, v7, 6, v6")
    a("v_xor_b32 v5, 64, v4")
    a(f"s_mul_i32 s3, s29, {8*28*128}")
    a("v_add_u32 v4, s3, v4")
    a("v_add_u32 v5, s3, v5")
    a("v_and_b32 v6, 31, v0")
    a("s_cmp_eq_u32 s24, 1")
    a("s_cbranch_scc1 K3_TOKB")
    a("v_lshlrev_b32 v6, 1, v6")
    a("s_and_b32 s3, s32, 31")
    a("s_lshl_b32 s3, s3, 6")
    a("s_lshr_b32 s38, s32, 5")
    a("s_add_u32 s38, s38, s3")
    a("s_mov_b32 s39, 0")
    a("s_branch K3_TOKJ")
    a.label("K3_TOKB")
    a("s_lshl_b32 s38, s32, 5")
    a("s_mov_b32 s39, 896")
    a.label("K3_TOKJ")
    a("v_add_u32 v6, s38, v6")
    a("v_mul_u32_u24 v8, 1792, v6")
    a("v_lshrrev_b32 v7, 5, v0")
    a("v_lshl_add_u32 v8, v7, 4, v8")
    a("s_lshl_b32 s3, s26, 7")
    a("s_add_u32 s39, s39, s3")
    a("s_lshl_b32 s3, s29, 6")
    a("s_add_u32 s39, s39, s3")
    a("s_lshl_b32 s3, s27, 12")
    a("s_add_u32 s3, s3, 65536")
    a("v_add_u32 v9, s3, v1")
    a("v_xor_b32 v10, 0x4000, v9")
    ACC = [96, 112]
    WF = [12, 20]
    a("s_waitcnt vmcnt(16)")
    a("s_barrier")

    def reads(s, buf):
        hd, f = s // 2, s % 2
        for nt in range(2):
            for t in range(2):
                off = (28 * hd + 16 * f + 8 * t) * 128
                a(f"ds_read_b64_tr_b16 {vr(WF[buf]+4*nt+2*t,2)}, v{4+nt} offset:{off}")

    reads(0, 0)
    for s in range(16):
        if s + 1 < 16:
            reads(s + 1, (s + 1) % 2)
            a(f"s_waitcnt vmcnt({15-s}) lgkmcnt(4)")
        else:
            a("s_waitcnt vmcnt(0) lgkmcnt(0)")
        for nt in range(2):
            mfma(a, ACC[nt], WF[s % 2] + 4 * nt, OFR + 4 * s, 0 if s == 0 else None)
    a("s_nop 15")
    a("s_nop 3")
    a("s_cmp_eq_u32 s29, 0")
    a("s_cbranch_scc1 K3_KH0")
    for q in range(4):
        a(f"ds_write_b128 v9, {vr(ACC[0]+4*q,4)} offset:{q*1024}")
    for r in range(16):
        a(f"v_mov_b32 v{ACC[0]+r}, v{ACC[1]+r}")
    a("s_branch K3_X")
    a.label("K3_KH0")
    for q in range(4):
        a(f"ds_write_b128 v9, {vr(ACC[1]+4*q,4)} offset:{q*1024}")
    a.label("K3_X")
    a("s_waitcnt lgkmcnt(0)")
    a("s_barrier")
    for q in range(4):
        a(f"ds_read_b128 {vr(OFR+4*q,4)}, v10 offset:{q*1024}")
    a("s_waitcnt lgkmcnt(0)")
    A = ACC[0]
    for r in range(16):
        a(f"v_add_f32 v{A+r}, v{A+r}, v{OFR+r}")
    P = 12
    for j in range(8):
        a(f"v_cvt_pk_bf16_f32 v{P+j}, v{A+2*j}, v{A+2*j+1}")
    a("s_nop 1")
    a(f"v_permlane32_swap_b32 v{P}, v{P+2}")
    a(f"v_permlane32_swap_b32 v{P+1}, v{P+3}")
    a(f"v_permlane32_swap_b32 v{P+4}, v{P+6}")
    a(f"v_permlane32_swap_b32 v{P+5}, v{P+7}")
    a("s_nop 1")
    a(f"buffer_store_dwordx4 {vr(P,4)}, v8, s[16:19], s39 offen")
    a(f"buffer_store_dwordx4 {vr(P+4,4)}, v8, s[16:19], s39 offen offset:32")
    a.label("K3_END")
    a("s_endpgm")
    kernel_desc(a, name, 128)


HEADER = """; Kernarg layout for this problem (72 bytes, ptrs only, base s[0:1]):
"""


def main():
    out = sys.argv[1] if len(sys.argv) > 1 else f"cdna_kernels/{NAME}.s"
    a = Asm()
    a.raw(HEADER.rstrip())
    a.raw(f"; @launch kernel=qkv_kernel grid=(256,1,1) block=(512,1,1) lds={K1_LDS}")
    a.raw(f"; @launch kernel=attn_kernel grid=(256,1,1) block=(512,1,1) lds={K2_LDS}")
    a.raw(f"; @launch kernel=proj_kernel grid=(224,1,1) block=(512,1,1) lds={K3_LDS}")
    a.raw('.amdgcn_target "amdgcn-amd-amdhsa--gfx950"')
    gen_k1(a)
    gen_k2(a)
    gen_k3(a)
    open(out, "w").write(a.text())


if __name__ == "__main__":
    main()
```

```python
import math, struct, sys

NAME = "concat_heads__sliding_local_dilated__softmax_full_mha__prompt"
STAMP = "stamp" in sys.argv[2:]


def f32bits(x):
    return struct.unpack("<I", struct.pack("<f", x))[0]


CSCALE = (28 ** -0.5) * math.log2(math.e)
QB, KVB, QA, KVA, OFA, OFB = 0x000000, 0x200000, 0x600000, 0x800000, 0xC00000, 0xE00000
FL = 0x1000000
FB_OFF, FA_OFF, FOA_OFF, FOB_OFF = FL + 0x1000, FL + 0x2000, FL + 0x3000, FL + 0x5000
STAMP_OFF = 0x1100000
WS_BYTES = 0x1010000
X_BYTES = 2048 * 448 * 2
W_BYTES = 448 * 1344 * 2
WO_BYTES = 448 * 448 * 2
OUT_BYTES = 2048 * 896 * 2
NEG_BIG = f32bits(-3.0e38)
M_OFF = 64.0
SLOT = 32768
MREG = 4 * SLOT
LDS_BYTES = MREG + 32768
SY = MREG + 0x7F00
POLL_MAX = 1 << 18
LPOLL_MAX = 1 << 22


class Asm:
    def __init__(self):
        self.lines = []
        self.uid = 0

    def __call__(self, s):
        self.lines.append("    " + s)

    def label(self, l):
        self.lines.append(l + ":")

    def raw(self, s):
        self.lines.append(s)

    def new(self, p):
        self.uid += 1
        return f"{p}_{self.uid}"

    def text(self):
        return "\n".join(self.lines) + "\n"


def vr(a, n):
    return f"v[{a}:{a+n-1}]"


def srd(a, d, ptr, nbytes):
    a(f"s_mov_b32 s{d}, s{ptr}")
    a(f"s_and_b32 s{d+1}, s{ptr+1}, 0xffff")
    a(f"s_mov_b32 s{d+2}, {nbytes:#x}")
    a(f"s_mov_b32 s{d+3}, 0x20000")


def mfma(a, d, A, B, C=None):
    c = "0" if C == 0 else vr(d if C is None else C, 16)
    a(f"v_mfma_f32_32x32x16_bf16 {vr(d,16)}, {vr(A,4)}, {vr(B,4)}, {c}")


def stamp(a, i, real=False):
    if not STAMP:
        return
    a(f"{'s_memrealtime' if real else 's_memtime'} s[{64+2*i}:{65+2*i}]")
    a("s_waitcnt lgkmcnt(0)")


def stamp_flush(a, n):
    if not STAMP:
        return
    a("s_waitcnt lgkmcnt(0)")
    a("s_mul_i32 s60, s2, 12")
    a(f"s_add_u32 s60, s60, s{W_}")
    a("s_lshl_b32 s60, s60, 7")
    a(f"s_add_u32 s60, s60, {STAMP_OFF:#x}")
    a("v_mov_b32 v0, s60")
    for i in range(n):
        a(f"v_mov_b32 v2, s{64+2*i}")
        a(f"global_store_dword v0, v2, s[20:21] offset:{4*i}")
        a("s_nop 1")


def max16(a, dst, S, extra=()):
    regs = [S + r for r in range(16)] + list(extra)
    a(f"v_max3_f32 v{dst}, v{regs[0]}, v{regs[1]}, v{regs[2]}")
    k = 3
    while k + 1 < len(regs):
        a(f"v_max3_f32 v{dst}, v{dst}, v{regs[k]}, v{regs[k+1]}")
        k += 2
    if k < len(regs):
        a(f"v_max_f32 v{dst}, v{dst}, v{regs[k]}")


def xhalf_max(a, m, t):
    a(f"v_mov_b32 v{t}, v{m}")
    a("s_nop 1")
    a(f"v_permlane32_swap_b32 v{m}, v{t}")
    a("s_nop 1")
    a(f"v_max_f32 v{m}, v{m}, v{t}")


WS = "s[24:27]"
W_, M_, TR, H_, QBK, MB, NB, TAG = 40, 41, 42, 43, 44, 45, 46, 47
VSY = 164
VTAG = 165
VZ = 166


def gpoll(a, vaddr, mlo, mhi, vtmp, sleep=4):
    L = a.new("GP")
    a(f"s_mov_b32 exec_lo, {mlo:#x}")
    a(f"s_mov_b32 exec_hi, {mhi:#x}")
    a(f"s_mov_b32 s62, {POLL_MAX}")
    a.label(L)
    a(f"buffer_load_dword v{vtmp}, v{vaddr}, {WS}, 0 offen sc1")
    a("s_waitcnt vmcnt(0)")
    a(f"v_cmp_ne_u32 vcc, s{TAG}, v{vtmp}")
    a("s_sub_u32 s62, s62, 1")
    a("s_nop 3")
    a(f"s_cbranch_vccz {L}_OK")
    a(f"s_sleep {sleep}")
    a("s_cmp_lg_u32 s62, 0")
    a(f"s_cbranch_scc1 {L}")
    a.label(L + "_OK")
    a("s_mov_b64 exec, -1")


def lpoll(a, off, nwords, thr, t, sleep=1):
    L = a.new("LP")
    a(f"s_mov_b32 s62, {LPOLL_MAX}")
    a.label(L)
    if nwords == 1:
        a(f"ds_read_b32 v{t}, v{VSY} offset:{off}")
        a("s_waitcnt lgkmcnt(0)")
    else:
        a(f"ds_read_b128 {vr(t,4)}, v{VSY} offset:{off}")
        if nwords == 8:
            a(f"ds_read_b128 {vr(t+4,4)}, v{VSY} offset:{off+16}")
        a("s_waitcnt lgkmcnt(0)")
        a(f"v_min3_u32 v{t}, v{t}, v{t+1}, v{t+2}")
        if nwords == 8:
            a(f"v_min3_u32 v{t}, v{t}, v{t+3}, v{t+4}")
            a(f"v_min3_u32 v{t}, v{t}, v{t+5}, v{t+6}")
            a(f"v_min_u32 v{t}, v{t}, v{t+7}")
        else:
            a(f"v_min_u32 v{t}, v{t}, v{t+3}")
    a(f"v_cmp_gt_u32 vcc, {thr}, v{t}")
    a("s_sub_u32 s62, s62, 1")
    a("s_nop 3")
    a(f"s_cbranch_vccz {L}_OK")
    if sleep:
        a(f"s_sleep {sleep}")
    a("s_cmp_lg_u32 s62, 0")
    a(f"s_cbranch_scc1 {L}")
    a.label(L + "_OK")


def flag_store(a, soff):
    a("s_mov_b64 exec, 1")
    a(f"buffer_store_dword v{VTAG}, v{VZ}, {WS}, s{soff} offen sc1")
    a("s_mov_b64 exec, -1")


def gen(a):
    kname = NAME + "_kernel"
    a.raw(".text")
    a.raw(f".globl {kname}")
    a.raw(".p2align 8")
    a.raw(f".type {kname},@function")
    a.label(kname)
    a("s_cmp_ge_u32 s2, 256")
    a("s_cbranch_scc1 L_END")
    a("s_load_dwordx16 s[4:19], s[0:1], 0")
    a("s_load_dwordx2 s[20:21], s[0:1], 64")
    a("v_lshrrev_b32 v1, 6, v0")
    a("v_and_b32 v0, 63, v0")
    a(f"v_readfirstlane_b32 s{W_}, v1")
    a("v_lshlrev_b32 v1, 4, v0")
    a(f"s_and_b32 s{M_}, s2, 1")
    a(f"s_lshl_b32 s{M_}, s{M_}, 3")
    a("s_bfe_u32 s3, s2, 0x30003")
    a(f"s_add_u32 s{M_}, s{M_}, s3")
    a(f"s_bfe_u32 s{TR}, s2, 0x20001")
    a(f"s_lshl_b32 s{TR}, s{TR}, 2")
    a("s_lshr_b32 s3, s2, 6")
    a(f"s_add_u32 s{TR}, s{TR}, s3")
    a(f"s_and_b32 s{H_}, s2, 15")
    a(f"s_lshr_b32 s{QBK}, s2, 4")
    a(f"s_and_b32 s{MB}, s2, 7")
    a(f"s_lshl_b32 s{MB}, s{MB}, 2")
    a("s_bfe_u32 s3, s2, 0x20003")
    a(f"s_add_u32 s{MB}, s{MB}, s3")
    a(f"s_lshr_b32 s{NB}, s2, 5")
    a(f"v_mov_b32 v{VSY}, {SY:#x}")
    a(f"v_mov_b32 v{VZ}, 0")
    a("s_waitcnt lgkmcnt(0)")
    stamp(a, 0)
    stamp(a, 1, True)
    a(f"s_add_u32 s22, s20, {FL:#x}")
    a("s_addc_u32 s23, s21, 0")
    a(f"s_load_dword s{TAG}, s[22:23], 0")
    srd(a, 24, 20, WS_BYTES)
    a(f"s_cmp_ge_u32 s{W_}, 8")
    a("s_cbranch_scc1 L_HELPER")
    gen_compute(a)
    gen_helper(a)
    a.label("L_END")
    a("s_endpgm")
    a.raw('.section .rodata,"a"')
    a.raw(".p2align 6")
    a.raw(f".amdhsa_kernel {kname}")
    a.raw("  .amdhsa_next_free_vgpr 168")
    a.raw("  .amdhsa_next_free_sgpr 100")
    a.raw("  .amdhsa_accum_offset 168")
    a.raw("  .amdhsa_group_segment_fixed_size 0")
    a.raw("  .amdhsa_kernarg_size 72")
    a.raw("  .amdhsa_user_sgpr_count 2")
    a.raw("  .amdhsa_user_sgpr_kernarg_segment_ptr 1")
    a.raw("  .amdhsa_system_sgpr_workgroup_id_x 1")
    a.raw(".end_amdhsa_kernel")


def tag_finish(a):
    a("s_waitcnt lgkmcnt(0)")
    a(f"s_mul_i32 s{TAG}, s{TAG}, 0x9e3779b1")
    a(f"s_add_u32 s{TAG}, s{TAG}, 0x7f4a7c15")
    a(f"v_mov_b32 v{VTAG}, s{TAG}")


def gen_compute(a):
    U, G, N, TT, QBASE, KVBASE = 48, 49, 50, 51, 52, 53
    VFREE, VCNT = 163, 162
    a(f"s_and_b32 s{U}, s{W_}, 3")
    a(f"s_lshr_b32 s{G}, s{W_}, 2")
    a(f"s_cmp_lg_u32 s{W_}, 0")
    a("s_cbranch_scc1 C_NOZ")
    a("v_lshlrev_b32 v2, 2, v0")
    a(f"v_add_u32 v2, {SY:#x}, v2")
    a(f"ds_write_b32 v2, v{VZ}")
    a.label("C_NOZ")
    a(f"s_lshl_b32 s3, s{W_}, 2")
    a(f"s_add_u32 s3, s3, {SY+16:#x}")
    a(f"v_mov_b32 v{VFREE}, s3")
    a(f"v_mov_b32 v{VCNT}, 0")
    a("v_and_b32 v16, 31, v0")
    a(f"s_lshl_b32 s3, s{U}, 5")
    a("v_add_u32 v16, s3, v16")
    a("v_bfe_u32 v17, v16, 1, 3")
    a("v_lshrrev_b32 v18, 5, v0")
    a("v_lshlrev_b32 v16, 7, v16")
    for ks in range(4):
        a(f"v_or_b32 v19, {2*ks}, v18")
        a("v_xor_b32 v19, v19, v17")
        a(f"v_lshl_add_u32 v{8+ks}, v19, 4, v16")
    a("v_bfe_u32 v19, v0, 2, 2")
    a("v_lshl_add_u32 v19, v18, 3, v19")
    a("v_mul_u32_u24 v19, 192, v19")
    a("v_bfe_u32 v20, v0, 4, 1")
    a("v_lshl_add_u32 v19, v20, 5, v19")
    a("v_and_b32 v20, 3, v0")
    a("v_lshl_add_u32 v19, v20, 3, v19")
    a(f"s_and_b32 s3, s{TR}, 1")
    a("s_lshl_b32 s3, s3, 3")
    a(f"s_mul_i32 s54, s{G}, 112")
    a("s_add_u32 s3, s3, s54")
    a("s_add_u32 s3, s3, 16384")
    a("v_add_u32 v12, s3, v19")
    a(f"s_mul_i32 s54, s{TR}, 3")
    a(f"s_lshl_b32 s3, s{G}, 1")
    a("s_add_u32 s54, s54, s3")
    a(f"s_lshl_b32 s{TT}, s{M_}, 2")
    a(f"s_add_u32 s{TT}, s{TT}, s{U}")
    a(f"s_mov_b32 s{QBASE}, {QB:#x}")
    a(f"s_mov_b32 s{KVBASE}, {KVB:#x}")
    a(f"s_mov_b32 s{N}, 0")
    a(f"s_lshl_b32 s63, s{TR}, 7")
    a(f"s_lshl_b32 s3, s{M_}, 2")
    a("s_add_u32 s63, s63, s3")
    XF = [24, 72]
    WF = [40, 88]
    ACC = [120, 136]
    PK = 152
    TMP = 16

    def reads(buf, ns):
        for ks in range(4):
            a(f"ds_read_b128 {vr(XF[buf]+4*ks,4)}, v{8+ks}")
            for i in range(ns):
                for t in range(2):
                    off = (16 * ks + 4 * t) * 192 + i * 56
                    a(f"ds_read_b64_tr_b16 {vr(WF[buf]+8*ks+4*i+2*t,2)}, v12 offset:{off}")

    def mfmas(types, buf):
        for ks in range(4):
            for i, ty in enumerate(types):
                if ty == 'T':
                    mfma(a, ACC[i], WF[buf] + 8 * ks + 4 * i, XF[buf] + 4 * ks)
                else:
                    mfma(a, ACC[i], XF[buf] + 4 * ks, WF[buf] + 8 * ks + 4 * i)

    def advance():
        for r in range(8, 13):
            a(f"v_add_u32 v{r}, {SLOT}, v{r}")
        for r in range(8, 13):
            a(f"v_and_b32 v{r}, {4*SLOT-1:#x}, v{r}")
        a(f"v_add_u32 v{VCNT}, 1, v{VCNT}")

    def done_signal(doff, foff):
        L = a.new("DS")
        a("s_waitcnt vmcnt(0)")
        a(f"v_mov_b32 v{TMP}, 1")
        a("s_mov_b64 exec, 1")
        a(f"ds_add_rtn_u32 v{TMP+1}, v{VSY}, v{TMP} offset:{doff}")
        a("s_waitcnt lgkmcnt(0)")
        a(f"v_readfirstlane_b32 s3, v{TMP+1}")
        a("s_mov_b64 exec, -1")
        a("s_nop 3")
        a("s_cmp_lg_u32 s3, 7")
        a(f"s_cbranch_scc1 {L}")
        a(f"s_add_u32 s3, s63, {foff:#x}")
        flag_store(a, 3)
        a.label(L)

    a(f"s_cmp_eq_u32 s{G}, 0")
    a("s_cbranch_scc0 C_SEL1")
    a(f"s_cmp_le_u32 s{TR}, 10")
    a("s_cbranch_scc1 C_G_TT")
    a("s_branch C_G_NN")
    a.label("C_SEL1")
    a(f"s_cmp_le_u32 s{TR}, 9")
    a("s_cbranch_scc1 C_G_T")
    a("s_branch C_G_N")

    for types in ("TT", "NN", "T", "N"):
        ns = len(types)
        L = f"C_G_{types}"
        a.label(L)
        for i in range(ns):
            for r in range(16):
                a(f"v_mov_b32 v{ACC[i]+r}, 0")
        for r in range(16):
            a(f"v_mov_b32 v{XF[1]+r}, 0")
        for r in range(32):
            a(f"v_mov_b32 v{WF[1]+r}, 0")
        stamp(a, 2)
        a.label(L + "_LOOP")
        a("s_barrier")
        reads(0, ns)
        mfmas(types, 1)
        advance()
        a(f"s_cmp_lg_u32 s{N}, 8")
        a(f"s_cbranch_scc1 {L}_NOW")
        a("s_waitcnt vmcnt(0)")
        a.label(L + "_NOW")
        a("s_waitcnt lgkmcnt(0)")
        a("s_barrier")
        reads(1, ns)
        mfmas(types, 0)
        advance()
        a(f"s_cmp_eq_u32 s{N}, 6")
        a(f"s_cbranch_scc1 {L}_EPI")
        a.label(L + "_BACK")
        a("s_waitcnt lgkmcnt(0)")
        a(f"s_add_u32 s{N}, s{N}, 2")
        a(f"s_cmp_lt_u32 s{N}, 14")
        a(f"s_cbranch_scc1 {L}_LOOP")
        mfmas(types, 1)
        a.label(L + "_EPI")
        a("s_nop 15")
        for i, ty in enumerate(types):
            A = ACC[i]
            a(f"s_add_u32 s56, s54, {i}")
            a("s_lshr_b32 s57, s56, 4")
            a("s_and_b32 s56, s56, 15")
            a("s_lshl_b32 s56, s56, 6")
            a(f"s_add_u32 s56, s56, s{TT}")
            if ty == 'T':
                a("s_lshl_b32 s58, s56, 11")
                a(f"s_add_u32 s58, s58, s{QBASE}")
                a("s_lshl_b32 s59, s56, 12")
                a(f"s_add_u32 s59, s59, s{KVBASE}")
                a(f"s_mov_b32 s60, {f32bits(CSCALE):#x}")
                a("s_cmp_eq_u32 s57, 0")
                a("s_cselect_b32 s58, s58, s59")
                a("s_cselect_b32 s60, s60, 1.0")
                for r in range(16):
                    a(f"v_mul_f32 v{A+r}, s60, v{A+r}")
                for j in range(8):
                    a(f"v_cvt_pk_bf16_f32 v{PK+j}, v{A+2*j}, v{A+2*j+1}")
                a("s_mov_b32 exec_lo, 0")
                a(f"v_mov_b32 v{PK+6}, 0")
                a(f"v_mov_b32 v{PK+7}, 0")
                a("s_mov_b32 exec_lo, -1")
            else:
                a("s_lshl_b32 s58, s56, 12")
                a(f"s_add_u32 s58, s58, s{KVBASE}")
                a("s_add_u32 s58, s58, 2048")
                for j in range(8):
                    a(f"v_cvt_pk_bf16_f32 v{PK+j}, v{A+2*j}, v{A+2*j+1}")
                a("s_mov_b32 exec_lo, 0xe0000000")
                a("s_mov_b32 exec_hi, 0xe0000000")
                for j in range(8):
                    a(f"v_mov_b32 v{PK+j}, 0")
                a("s_mov_b32 exec_lo, 0x10000000")
                a("s_mov_b32 exec_hi, 0x10000000")
                for j in range(8):
                    a(f"v_mov_b32 v{PK+j}, 0x3f803f80")
                a("s_mov_b64 exec, -1")
            a(f"buffer_store_dwordx4 {vr(PK,4)}, v1, {WS}, s58 offen sc1")
            a(f"buffer_store_dwordx4 {vr(PK+4,4)}, v1, {WS}, s58 offen offset:1024 sc1")
            a("s_nop 1")
        a(f"s_cmp_eq_u32 s{N}, 14")
        a("s_cbranch_scc1 C_ATT")
        stamp(a, 4)
        for i in range(ns):
            for r in range(16):
                a(f"v_mov_b32 v{ACC[i]+r}, 0")
        a(f"s_and_b32 s3, s{U}, 1")
        a("s_lshl_b32 s3, s3, 5")
        a(f"s_lshl_b32 s{TT}, s{M_}, 1")
        a(f"s_add_u32 s{TT}, s{TT}, s3")
        a(f"s_lshr_b32 s3, s{U}, 1")
        a(f"s_add_u32 s{TT}, s{TT}, s3")
        a(f"s_mov_b32 s{QBASE}, {QA:#x}")
        a(f"s_mov_b32 s{KVBASE}, {KVA:#x}")
        a(f"s_branch {L}_BACK")

    Q0, Q1, KF, VF, PA_, PB_, T0, T1 = 4, 8, 12, 20, 28, 36, 44, 45
    O, CM, SA, SB = 48, 64, 80, 96
    OFR = 112
    FU = 144
    VCUR, VNXT = 2, 3
    VX1, VX2, VPXO, VPXP = 152, 153, 154, 155
    VW0, VW1, VOA, VOB, VEX, VFOB = 156, 157, 158, 159, 160, 161
    QT, PT, KQ = 51, 52, 53
    a.label("C_ATT")
    stamp(a, 5)
    tag_finish(a)
    a(f"s_lshl_b32 s{QT}, s{QBK}, 2")
    a(f"s_add_u32 s{QT}, s{QT}, s{U}")
    a(f"s_lshl_b32 s3, s{U}, 11")
    a(f"s_add_u32 s3, s3, {MREG}")
    a("v_add_u32 v46, s3, v1")
    a(f"s_lshl_b32 s3, s{G}, 14")
    a(f"s_add_u32 s3, s3, {2*SLOT}")
    a(f"v_add_u32 v{VCUR}, s3, v1")
    a(f"v_add_u32 v{VNXT}, {SLOT}, v{VCUR}")
    a(f"v_add_u32 v47, {2*SLOT}, v1")
    for r in range(16):
        a(f"v_mov_b32 v{O+r}, 0")
    for r in range(4):
        a(f"v_mov_b32 v{PB_+4+r}, 0")
        a(f"v_mov_b32 v{VF+4+r}, 0")
    a(f"s_and_b32 s{PT}, s{W_}, 1")
    a(f"s_lshr_b32 s{KQ}, s{W_}, 1")
    a(f"s_lshl_b32 s3, s{U}, 12")
    a(f"s_add_u32 s3, s3, {MREG+8192}")
    a(f"v_add_u32 v{VX1}, s3, v1")
    a(f"s_lshl_b32 s3, s{U}, 8")
    a(f"s_add_u32 s3, s3, {MREG+24576}")
    a(f"v_lshlrev_b32 v{VX2}, 2, v0")
    a(f"v_add_u32 v{VX2}, s3, v{VX2}")
    a(f"s_lshl_b32 s3, s{W_}, 2")
    a(f"s_add_u32 s3, s3, {SY+64:#x}")
    a(f"v_mov_b32 v{VPXO}, s3")
    a(f"v_xor_b32 v{VPXP}, 16, v{VPXO}")
    a("v_lshrrev_b32 v6, 5, v0")
    a("v_bfe_u32 v7, v0, 2, 2")
    a("v_lshl_add_u32 v6, v6, 2, v7")
    a("v_lshlrev_b32 v6, 7, v6")
    a("v_bfe_u32 v7, v0, 4, 1")
    a("v_lshl_add_u32 v6, v7, 5, v6")
    a("v_and_b32 v7, 3, v0")
    a("v_lshl_add_u32 v6, v7, 3, v6")
    a("v_bfe_u32 v7, v0, 3, 1")
    a(f"v_lshl_add_u32 v{VW0}, v7, 6, v6")
    a(f"s_mul_i32 s3, s{KQ}, {4*28*128}")
    a(f"v_add_u32 v{VW0}, s3, v{VW0}")
    a(f"v_xor_b32 v{VW1}, 64, v{VW0}")
    a(f"s_mul_i32 s3, s{PT}, {4*3*2048}")
    a(f"v_add_u32 v{VEX}, s3, v1")
    srd(a, 36, 16, OUT_BYTES)
    a("v_and_b32 v11, 31, v0")
    a(f"v_lshlrev_b32 v{VOA}, 1, v11")
    a(f"s_lshl_b32 s3, s{MB}, 6")
    a(f"s_add_u32 s60, s3, s{PT}")
    a(f"v_add_u32 v{VOA}, s60, v{VOA}")
    a(f"s_lshl_b32 s60, s{PT}, 5")
    a("s_add_u32 s60, s60, s3")
    a(f"v_add_u32 v{VOB}, s60, v11")
    a(f"v_mul_u32_u24 v{VOA}, 1792, v{VOA}")
    a(f"v_mul_u32_u24 v{VOB}, 1792, v{VOB}")
    a("v_lshrrev_b32 v11, 5, v0")
    a(f"v_lshl_add_u32 v{VOA}, v11, 4, v{VOA}")
    a(f"v_lshl_add_u32 v{VOB}, v11, 4, v{VOB}")
    a(f"s_lshl_b32 s60, s{NB}, 7")
    a(f"s_lshl_b32 s3, s{KQ}, 5")
    a("s_add_u32 s60, s60, s3")
    a("s_add_u32 s61, s60, 896")
    a(f"s_lshl_b32 s3, s{MB}, 1")
    a(f"s_add_u32 s3, s3, s{PT}")
    a("s_lshl_b32 s59, s3, 15")
    a("s_lshl_b32 s3, s3, 7")
    a(f"s_lshl_b32 s56, s{KQ}, 5")
    a("s_add_u32 s3, s3, s56")
    a(f"s_add_u32 s3, s3, {FOB_OFF:#x}")
    a(f"v_lshlrev_b32 v{VFOB}, 2, v0")
    a(f"v_add_u32 v{VFOB}, s3, v{VFOB}")
    a(f"s_lshl_b32 s56, s{KQ}, 13")
    a("s_add_u32 s59, s59, s56")
    a(f"s_add_u32 s59, s59, {OFB:#x}")
    a(f"s_lshl_b32 s58, s{PT}, 5")
    a(f"s_add_u32 s58, s58, s{MB}")
    a("s_lshl_b32 s58, s58, 15")
    a("s_add_u32 s58, s58, s56")
    a(f"s_add_u32 s58, s58, {OFA:#x}")
    a(f"s_lshl_b32 s57, s{QT}, 4")
    a(f"s_add_u32 s57, s57, s{H_}")
    a("s_lshl_b32 s57, s57, 1")
    a(f"s_add_u32 s57, s57, s{G}")
    a("s_lshl_b32 s56, s57, 2")
    a(f"s_add_u32 s56, s56, {FOB_OFF:#x}")
    a("s_lshl_b32 s57, s57, 10")
    a(f"s_add_u32 s57, s57, {OFB:#x}")
    a("s_barrier")
    stamp(a, 6)
    a(f"ds_read_b128 {vr(Q0,4)}, v46")
    a(f"ds_read_b128 {vr(Q1,4)}, v46 offset:1024")
    a(f"ds_read_b128 {vr(KF,4)}, v47")
    a(f"ds_read_b128 {vr(KF+4,4)}, v47 offset:1024")
    a("s_waitcnt lgkmcnt(0)")
    mfma(a, SB, KF, Q0, 0)
    mfma(a, SB, KF + 4, Q1)
    a(f"ds_read_b128 {vr(KF,4)}, v{VCUR}")
    a(f"ds_read_b128 {vr(KF+4,4)}, v{VCUR} offset:1024")
    a("s_nop 15")
    max16(a, T0, SB)
    xhalf_max(a, T0, T1)
    a(f"v_add_f32 v{T0}, {f32bits(M_OFF):#x}, v{T0}")
    for r in range(16):
        a(f"v_sub_f32 v{CM+r}, 0, v{T0}")
    a("s_waitcnt lgkmcnt(0)")
    a("s_nop 0")
    mfma(a, SA, KF, Q0, CM)
    mfma(a, SA, KF + 4, Q1)
    a(f"ds_read_b128 {vr(KF,4)}, v{VCUR} offset:4096")
    a(f"ds_read_b128 {vr(KF+4,4)}, v{VCUR} offset:5120")
    a(f"ds_read_b128 {vr(VF,4)}, v{VCUR} offset:2048")
    a("s_mov_b32 s55, 16")
    a("s_mov_b32 s54, 0")
    a("s_nop 15")

    def step(j, sc, sn):
        PA = PA_ if j % 2 == 0 else PB_
        PB = PB_ if j % 2 == 0 else PA_
        VB = VF + 4
        if j == 2:
            a("s_waitcnt vmcnt(0)")
            a("s_barrier")
        a("s_waitcnt lgkmcnt(1)")
        mfma(a, sn, KF, Q0, CM)
        for r in range(0, 4):
            a(f"v_exp_f32 v{sc+r}, v{sc+r}")
        mfma(a, sn, KF + 4, Q1)
        kb, ko = (VCUR, (j + 2) * 4096) if j + 2 < 4 else (VNXT, (j + 2 - 4) * 4096)
        a(f"ds_read_b128 {vr(KF,4)}, v{kb} offset:{ko}")
        a(f"ds_read_b128 {vr(KF+4,4)}, v{kb} offset:{ko+1024}")
        for r in range(4, 8):
            a(f"v_exp_f32 v{sc+r}, v{sc+r}")
        a(f"v_cvt_pk_bf16_f32 v{PA+0}, v{sc+0}, v{sc+1}")
        a(f"v_cvt_pk_bf16_f32 v{PA+1}, v{sc+2}, v{sc+3}")
        mfma(a, O, VB, PB + 4)
        a(f"ds_read_b128 {vr(VB,4)}, v{VCUR} offset:{j*4096+3072}")
        for r in range(8, 12):
            a(f"v_exp_f32 v{sc+r}, v{sc+r}")
        a(f"v_cvt_pk_bf16_f32 v{PA+2}, v{sc+4}, v{sc+5}")
        a(f"v_cvt_pk_bf16_f32 v{PA+3}, v{sc+6}, v{sc+7}")
        for r in range(12, 14):
            a(f"v_exp_f32 v{sc+r}, v{sc+r}")
        a("s_waitcnt lgkmcnt(3)")
        mfma(a, O, VF, PA)
        vb, vo = (VCUR, (j + 1) * 4096 + 2048) if j + 1 < 4 else (VNXT, 2048)
        a(f"ds_read_b128 {vr(VF,4)}, v{vb} offset:{vo}")
        for r in range(14, 16):
            a(f"v_exp_f32 v{sc+r}, v{sc+r}")
        for q in range(4, 8):
            a(f"v_cvt_pk_bf16_f32 v{PA+q}, v{sc+2*q}, v{sc+2*q+1}")

    a.label("C_LOOP")
    step(0, SA, SB)
    step(1, SB, SA)
    step(2, SA, SB)
    step(3, SB, SA)
    a(f"v_mov_b32 v{VCUR}, v{VNXT}")
    a(f"v_add_u32 v{VNXT}, {SLOT}, v{VNXT}")
    a(f"v_and_b32 v{VNXT}, {4*SLOT-1:#x}, v{VNXT}")
    a("s_add_u32 s54, s54, 1")
    a("s_cmp_lt_u32 s54, 8")
    a("s_cbranch_scc1 C_LOOP")
    a("s_waitcnt lgkmcnt(0)")
    mfma(a, O, VF + 4, PB_ + 4)
    stamp(a, 7)
    a("s_cmp_ge_u32 s2, 224")
    a("s_cbranch_scc1 C_NOOA")
    a("s_add_u32 s3, s58, 4096")
    for i in range(8):
        a(f"buffer_load_dwordx4 {vr(OFR+4*i,4)}, v1, {WS}, s{58 if i < 4 else 3} offen offset:{(i%4)*1024} sc1")
    a.label("C_NOOA")
    a(f"v_mov_b32 v{T1}, 1")
    a("s_nop 12")
    a(f"s_cmp_eq_u32 s{G}, 1")
    a("s_cbranch_scc1 C_G1")
    a(f"ds_write_b128 v{VX1}, {vr(O+8,4)}")
    a(f"ds_write_b128 v{VX1}, {vr(O+12,4)} offset:1024")

    def px_wait():
        a("s_waitcnt lgkmcnt(0)")
        a("s_barrier")

    def px_wait_old():
        L = a.new("PX")
        a(f"s_mov_b32 s62, {LPOLL_MAX}")
        a.label(L)
        a(f"ds_read_b32 v{FU}, v{VPXP}")
        a("s_waitcnt lgkmcnt(0)")
        a(f"v_cmp_eq_u32 vcc, 0, v{FU}")
        a("s_sub_u32 s62, s62, 1")
        a("s_nop 3")
        a(f"s_cbranch_vccz {L}_OK")
        a("s_cmp_lg_u32 s62, 0")
        a(f"s_cbranch_scc1 {L}")
        a.label(L + "_OK")

    px_wait()
    a(f"ds_read_b128 {vr(SA,4)}, v{VX1} offset:2048")
    a(f"ds_read_b128 {vr(SA+4,4)}, v{VX1} offset:3072")
    a(f"ds_read_b32 v{T0}, v{VX2}")
    a("s_waitcnt lgkmcnt(0)")
    a(f"v_add_f32 v{T0}, v{T0}, v{O+12}")
    for r in range(8):
        a(f"v_add_f32 v{SA+r}, v{SA+r}, v{O+r}")
    a("s_branch C_FIN")
    a.label("C_G1")
    a(f"ds_write_b128 v{VX1}, {vr(O,4)} offset:2048")
    a(f"ds_write_b128 v{VX1}, {vr(O+4,4)} offset:3072")
    a(f"ds_write_b32 v{VX2}, v{O+12}")
    px_wait()
    a(f"ds_read_b128 {vr(SA,4)}, v{VX1}")
    a(f"ds_read_b128 {vr(SA+4,4)}, v{VX1} offset:1024")
    a("s_waitcnt lgkmcnt(0)")
    for r in range(8):
        a(f"v_add_f32 v{SA+r}, v{SA+r}, v{O+8+r}")
    a(f"v_mov_b32 v{T0}, v{SA+4}")
    a.label("C_FIN")
    a(f"v_mov_b32 v{T1}, v{T0}")
    a("s_nop 1")
    a(f"v_permlane32_swap_b32 v{T0}, v{T1}")
    a("s_nop 1")
    a(f"v_mul_f32 v{T0}, 0, v{T1}")
    for r in range(8):
        a(f"v_fma_f32 v{T0}, v{SA+r}, 0, v{T0}")
    a(f"v_cmp_u_f32 vcc, v{T0}, v{T0}")
    a("s_nop 4")
    a("s_cbranch_vccnz C_FALLBACK")
    a.label("C_STORE")
    a(f"v_rcp_f32 v{T1}, v{T1}")
    a("s_nop 0")
    for r in range(8):
        a(f"v_mul_f32 v{SA+r}, v{SA+r}, v{T1}")
    for j in range(4):
        a(f"v_cvt_pk_bf16_f32 v{4+j}, v{SA+2*j}, v{SA+2*j+1}")
    a(f"s_cmp_eq_u32 s{G}, 0")
    a("s_cbranch_scc1 C_NOPAD")
    a("s_mov_b32 exec_lo, 0")
    a("v_mov_b32 v6, 0")
    a("v_mov_b32 v7, 0")
    a("s_mov_b32 exec_lo, -1")
    a.label("C_NOPAD")
    a(f"buffer_store_dwordx4 v[4:7], v1, {WS}, s57 offen sc1")
    stamp(a, 8)
    WOF = 16
    PACC = 80
    XR = 144
    a("s_cmp_ge_u32 s2, 224")
    a("s_cbranch_scc0 C_PROJ")
    a("s_waitcnt vmcnt(0)")
    flag_store(a, 56)
    a("s_branch C_DONE")
    a.label("C_PROJ")

    def wo_reads(base):
        for s in range(8):
            hd, f = s // 2, s % 2
            for nt, b in enumerate((8, 9)):
                for t in range(2):
                    off = (28 * hd + 16 * f + 8 * t) * 128
                    a(f"ds_read_b64_tr_b16 {vr(WOF+8*s+4*nt+2*t,2)}, v{b} offset:{off}")

    def proj_mfma(wait_vm):
        for s in range(8):
            if wait_vm:
                a(f"s_waitcnt vmcnt({7-s})")
            for nt in range(2):
                mfma(a, PACC + 16 * nt, WOF + 8 * s + 4 * nt, OFR + 4 * s, 0 if s == 0 else None)

    def part_write(tag, base):
        a(f"v_add_u32 v10, {base:#x}, v{VEX}")
        for kq in range(4):
            a(f"s_cmp_lg_u32 s{KQ}, {kq}")
            a(f"s_cbranch_scc1 C_PX{tag}{kq}")
            for d in range(4):
                if d == kq:
                    continue
                idx = kq if kq < d else kq - 1
                off = (d * 3 + idx) * 2048
                a(f"ds_write_b128 v10, {vr(PACC+8*d,4)} offset:{off}")
                a(f"ds_write_b128 v10, {vr(PACC+8*d+4,4)} offset:{off+1024}")
            if kq:
                for r in range(8):
                    a(f"v_mov_b32 v{PACC+r}, v{PACC+8*kq+r}")
            a.label(f"C_PX{tag}{kq}")
        a(f"s_mul_i32 s3, s{KQ}, {3*2048}")
        a("v_add_u32 v11, s3, v10")

    def part_final(vout, sout):
        R = PACC + 8
        for idx in range(3):
            a(f"ds_read_b128 {vr(R+8*idx,4)}, v11 offset:{idx*2048}")
            a(f"ds_read_b128 {vr(R+8*idx+4,4)}, v11 offset:{idx*2048+1024}")
        for idx in range(3):
            a(f"s_waitcnt lgkmcnt({4-2*idx})")
            for r in range(8):
                a(f"v_add_f32 v{PACC+r}, v{PACC+r}, v{R+8*idx+r}")
        for j in range(4):
            a(f"v_cvt_pk_bf16_f32 v{12+j}, v{PACC+2*j}, v{PACC+2*j+1}")
        a("s_nop 1")
        a("v_permlane32_swap_b32 v12, v14")
        a("v_permlane32_swap_b32 v13, v15")
        a("s_nop 1")
        a(f"buffer_store_dwordx4 v[12:15], v{vout}, s[36:39], s{sout} offen")

    a(f"v_add_u32 v8, {2*SLOT}, v{VW0}")
    a(f"v_add_u32 v9, {2*SLOT}, v{VW1}")
    wo_reads(0)
    a("s_waitcnt vmcnt(0)")
    flag_store(a, 56)
    a("s_waitcnt lgkmcnt(0)")
    stamp(a, 9)
    proj_mfma(False)
    a("s_barrier")
    a("s_nop 13")
    part_write("A", 2 * SLOT)
    a(f"v_mov_b32 v8, v{VW0}")
    a(f"v_mov_b32 v9, v{VW1}")
    wo_reads(0)
    a("s_waitcnt lgkmcnt(0)")
    a("s_barrier")
    part_final(VOA, 60)
    stamp(a, 10)
    gpoll(a, VFOB, 0xff, 0, FU, sleep=1)
    stamp(a, 11)
    a("s_add_u32 s3, s59, 4096")
    for i in range(8):
        a(f"buffer_load_dwordx4 {vr(OFR+4*i,4)}, v1, {WS}, s{59 if i < 4 else 3} offen offset:{(i%4)*1024} sc1")
    for s in range(8):
        a(f"s_waitcnt vmcnt({7-s})")
        for nt in range(2):
            mfma(a, PACC + 16 * nt, WOF + 8 * s + 4 * nt, OFR + 4 * s, 0 if s == 0 else None)
    a("s_nop 15")
    a("s_nop 3")
    part_write("B", 112 * 1024)
    a("s_waitcnt lgkmcnt(0)")
    a("s_barrier")
    part_final(VOB, 61)
    a(f"s_or_b32 s3, s2, s{W_}")
    a("s_cmp_lg_u32 s3, 0")
    a("s_cbranch_scc1 C_DONE")
    a(f"s_mov_b32 s3, {FL:#x}")
    flag_store(a, 3)
    a.label("C_DONE")
    stamp(a, 12)
    if STAMP:
        a("s_waitcnt vmcnt(0)")
    stamp(a, 13)
    stamp(a, 14, True)
    stamp_flush(a, 15)
    a("s_endpgm")

    a.label("C_FALLBACK")
    a(f"s_lshl_b32 s62, s{H_}, 18")
    a(f"s_add_u32 s62, s62, {KVB:#x}")
    a(f"s_mov_b32 s3, {NEG_BIG:#x}")
    a(f"v_mov_b32 v{T0}, s3")
    a("s_mov_b32 s55, 0")
    a("s_mov_b32 s3, s62")
    a.label("C_FB1")
    a(f"buffer_load_dwordx4 {vr(KF,4)}, v1, {WS}, s3 offen sc1")
    a(f"buffer_load_dwordx4 {vr(KF+4,4)}, v1, {WS}, s3 offen offset:1024 sc1")
    a("s_waitcnt vmcnt(0)")
    mfma(a, SB, KF, Q0, 0)
    mfma(a, SB, KF + 4, Q1)
    a("s_nop 15")
    a("s_nop 3")
    max16(a, T1, SB, extra=[T0])
    a(f"v_mov_b32 v{T0}, v{T1}")
    a("s_add_u32 s3, s3, 4096")
    a("s_add_u32 s55, s55, 1")
    a("s_cmp_lt_u32 s55, 64")
    a("s_cbranch_scc1 C_FB1")
    xhalf_max(a, T0, T1)
    for r in range(16):
        a(f"v_sub_f32 v{CM+r}, 0, v{T0}")
    for r in range(16):
        a(f"v_mov_b32 v{O+r}, 0")
    a("s_mov_b32 s55, 0")
    a("s_mov_b32 s3, s62")
    a.label("C_FB2")
    a(f"buffer_load_dwordx4 {vr(KF,4)}, v1, {WS}, s3 offen sc1")
    a(f"buffer_load_dwordx4 {vr(KF+4,4)}, v1, {WS}, s3 offen offset:1024 sc1")
    a(f"buffer_load_dwordx4 {vr(VF,4)}, v1, {WS}, s3 offen offset:2048 sc1")
    a(f"buffer_load_dwordx4 {vr(VF+4,4)}, v1, {WS}, s3 offen offset:3072 sc1")
    a("s_waitcnt vmcnt(0)")
    mfma(a, SB, KF, Q0, CM)
    mfma(a, SB, KF + 4, Q1)
    a("s_nop 15")
    a("s_nop 3")
    for r in range(16):
        a(f"v_exp_f32 v{SB+r}, v{SB+r}")
    a("s_nop 0")
    for q in range(8):
        a(f"v_cvt_pk_bf16_f32 v{PA_+q}, v{SB+2*q}, v{SB+2*q+1}")
    a("s_nop 1")
    mfma(a, O, VF, PA_)
    mfma(a, O, VF + 4, PA_ + 4)
    a("s_add_u32 s3, s3, 4096")
    a("s_add_u32 s55, s55, 1")
    a("s_cmp_lt_u32 s55, 64")
    a("s_cbranch_scc1 C_FB2")
    a("s_nop 15")
    a("s_nop 3")
    a(f"v_mov_b32 v{T0}, v{O+12}")
    a(f"v_mov_b32 v{T1}, v{O+12}")
    a("s_nop 1")
    a(f"v_permlane32_swap_b32 v{T0}, v{T1}")
    a(f"s_cmp_eq_u32 s{G}, 0")
    a("s_cbranch_scc1 C_FB3")
    for r in range(8):
        a(f"v_mov_b32 v{O+r}, v{O+8+r}")
    a.label("C_FB3")
    for r in range(8):
        a(f"v_mov_b32 v{SA+r}, v{O+r}")
    a("s_branch C_STORE")


def gen_helper(a):
    E, CC, XS, WSO, LX, LW, SL, N = 48, 49, 50, 51, 52, 53, 54, 55
    VFULL, VCNT, TMP = 163, 162, 144
    a.label("L_HELPER")
    a("s_setprio 3")
    a(f"s_sub_u32 s{E}, s{W_}, 8")
    srd(a, 28, 10, X_BYTES)
    srd(a, 32, 12, W_BYTES)
    a("v_lshrrev_b32 v2, 3, v0")
    a("v_and_b32 v3, 7, v0")
    a("v_lshrrev_b32 v12, 4, v0")
    for i in range(4):
        a(f"v_add_u32 v13, {4*i}, v12")
        a("v_and_b32 v13, 7, v13")
        a("v_xor_b32 v13, v13, v3")
        a(f"v_add_u32 v14, {8*i}, v2")
        a("v_mul_u32_u24 v15, 896, v14")
        a(f"v_lshl_add_u32 v{4+i}, v13, 4, v15")
        a(f"v_add_u32 v{8+i}, v{4+i}, v15")
    a("s_mov_b32 s3, 5462")
    for i in range(3):
        a(f"v_add_u32 v15, {64*i}, v0")
        a("v_mul_lo_u32 v16, v15, s3")
        a("v_lshrrev_b32 v16, 16, v16")
        a("v_mul_u32_u24 v17, 12, v16")
        a("v_sub_u32 v15, v15, v17")
        a("v_mul_u32_u24 v16, 2688, v16")
        a(f"v_lshl_add_u32 v{12+i}, v15, 4, v16")
    a(f"s_lshl_b32 s{XS}, s{M_}, 2")
    a(f"s_add_u32 s{XS}, s{XS}, s{E}")
    a(f"s_mul_i32 s{XS}, s{XS}, {32*896}")
    a(f"s_mul_i32 s{WSO}, s{TR}, 168")
    a(f"s_andn2_b32 s{WSO}, s{WSO}, 15")
    a(f"s_mul_i32 s3, s{E}, {16*2688}")
    a(f"s_add_u32 s{WSO}, s{WSO}, s3")
    a(f"s_lshl_b32 s{LX}, s{E}, 12")
    a(f"s_mul_i32 s{LW}, s{E}, 3072")
    a(f"s_add_u32 s{LW}, s{LW}, 16384")
    a(f"s_lshl_b32 s{CC}, s{TR}, 1")
    a(f"s_add_u32 s{CC}, s{CC}, s{M_}")
    a(f"s_mul_i32 s3, s{CC}, 37")
    a("s_lshr_b32 s3, s3, 8")
    a("s_mul_i32 s3, s3, 7")
    a(f"s_sub_u32 s{CC}, s{CC}, s3")
    a(f"s_mov_b32 s{SL}, 0")

    def gemm_issue():
        a(f"s_lshl_b32 s56, s{CC}, 7")
        a(f"s_add_u32 s56, s56, s{XS}")
        a(f"s_mul_i32 s57, s{CC}, {64*2688}")
        a(f"s_add_u32 s57, s57, s{WSO}")
        a(f"s_add_u32 s58, s{SL}, s{LX}")
        a(f"s_add_u32 s59, s{SL}, s{LW}")
        for i in range(4):
            a(f"s_add_u32 m0, s58, {i*1024}")
            a("s_nop 0")
            a(f"buffer_load_dwordx4 v{4+i}, s[28:31], s56 offen lds")
        for i in range(3):
            a(f"s_add_u32 m0, s59, {i*1024}")
            a("s_nop 0")
            a(f"buffer_load_dwordx4 v{12+i}, s[32:35], s57 offen lds")
        a(f"s_add_u32 s{CC}, s{CC}, 1")
        a(f"s_cmp_eq_u32 s{CC}, 7")
        a(f"s_cselect_b32 s{CC}, 0, s{CC}")
        a(f"s_add_u32 s{SL}, s{SL}, {SLOT}")
        a(f"s_and_b32 s{SL}, s{SL}, {4*SLOT-1:#x}")

    def publish(val):
        a(f"v_mov_b32 v{VCNT}, {val}")
        a(f"ds_write_b32 v{VFULL}, v{VCNT}")

    def flag_addr(dst, shead, base):
        a(f"v_lshrrev_b32 v{dst}, 4, v0")
        a(f"v_lshlrev_b32 v{dst}, 4, v{dst}")
        a(f"v_add_u32 v{dst}, s{shead}, v{dst}")
        a(f"v_mul_u32_u24 v{dst}, 171, v{dst}")
        a(f"v_lshrrev_b32 v{dst}, 9, v{dst}")
        a(f"v_min_u32 v{dst}, 15, v{dst}")
        a(f"v_lshlrev_b32 v{dst}, 7, v{dst}")
        a("v_and_b32 v19, 15, v0")
        a(f"v_lshl_add_u32 v{dst}, v19, 2, v{dst}")
        a(f"v_add_u32 v{dst}, {base:#x}, v{dst}")

    gemm_issue()
    gemm_issue()
    stamp(a, 2)
    flag_addr(18, H_, FB_OFF)
    a("s_waitcnt vmcnt(7)")
    a("s_barrier")
    gemm_issue()
    gemm_issue()
    tag_finish(a)
    a(f"s_lshl_b32 s60, s{TR}, 7")
    a(f"s_lshl_b32 s3, s{M_}, 2")
    a("s_add_u32 s60, s60, s3")
    a(f"s_add_u32 s61, s60, {FB_OFF:#x}")
    def shared_gpoll(k, vaddr, mlo, mhi, sleep=2):
        L = a.new("SG")
        a(f"s_cmp_lg_u32 s{E}, 0")
        a(f"s_cbranch_scc1 {L}")
        gpoll(a, vaddr, mlo, mhi, 19)
        a(f"v_mov_b32 v{VCNT}, 1")
        a(f"ds_write_b32 v{VSY}, v{VCNT} offset:{96+4*k}")
        a(f"s_branch {L}_J")
        a.label(L)
        lpoll(a, 96 + 4 * k, 1, 1, TMP, sleep=sleep)
        a.label(L + "_J")

    a(f"s_mov_b32 s{N}, 4")
    a.label("H_GL")
    a("s_waitcnt vmcnt(14)")
    a("s_barrier")
    a(f"s_cmp_lg_u32 s{N}, 7")
    a("s_cbranch_scc1 H_NOSW")
    srd(a, 28, 4, X_BYTES)
    srd(a, 32, 6, W_BYTES)
    for i in range(4):
        a(f"v_mov_b32 v{4+i}, v{8+i}")
    a(f"s_lshl_b32 s{XS}, s{M_}, 7")
    a(f"s_lshr_b32 s3, s{E}, 1")
    a("s_lshl_b32 s3, s3, 6")
    a(f"s_add_u32 s{XS}, s{XS}, s3")
    a(f"s_and_b32 s3, s{E}, 1")
    a(f"s_add_u32 s{XS}, s{XS}, s3")
    a(f"s_mul_i32 s{XS}, s{XS}, 896")
    a.label("H_NOSW")
    a(f"s_cmp_lg_u32 s{N}, 12")
    a("s_cbranch_scc1 H_NOFB")
    a(f"s_cmp_lg_u32 s{E}, 0")
    a("s_cbranch_scc1 H_NOFB")
    flag_store(a, 61)
    a.label("H_NOFB")
    gemm_issue()
    a(f"s_add_u32 s{N}, s{N}, 1")
    a(f"s_cmp_lt_u32 s{N}, 14")
    a("s_cbranch_scc1 H_GL")
    a("s_waitcnt vmcnt(14)")
    a("s_barrier")
    a("s_waitcnt vmcnt(7)")
    a("s_barrier")
    a("s_waitcnt vmcnt(0)")
    a("s_barrier")
    stamp(a, 4)
    shared_gpoll(0, 18, 0xffffffff, 0xffff, sleep=1)
    stamp(a, 5)
    KVS = 50
    a(f"s_lshl_b32 s{KVS}, s{H_}, 18")
    a(f"s_add_u32 s{KVS}, s{KVS}, {KVB:#x}")
    a(f"s_lshl_b32 s{LX}, s{E}, 13")
    a(f"s_add_u32 s{KVS}, s{KVS}, s{LX}")

    def kv_issue(c):
        slot = (14 + c) % 4
        a(f"s_add_u32 s56, s{QBK}, {c}")
        a("s_and_b32 s56, s56, 7")
        a("s_lshl_b32 s56, s56, 15")
        a(f"s_add_u32 s56, s56, s{KVS}")
        a("s_add_u32 s57, s56, 4096")
        for half in range(2):
            a(f"s_add_u32 m0, s{LX}, {slot*SLOT + half*4096}")
            a("s_nop 0")
            for i in range(4):
                a(f"buffer_load_dwordx4 v1, {WS}, s{56+half} offen offset:{i*1024} sc1 lds")

    a(f"s_lshl_b32 s56, s{H_}, 6")
    a(f"s_lshl_b32 s3, s{QBK}, 2")
    a("s_add_u32 s56, s56, s3")
    a(f"s_add_u32 s56, s56, s{E}")
    a("s_lshl_b32 s56, s56, 11")
    a(f"s_lshl_b32 s3, s{E}, 11")
    a(f"s_add_u32 m0, s3, {MREG}")
    a("s_nop 0")
    for i in range(2):
        a(f"buffer_load_dwordx4 v1, {WS}, s56 offen offset:{i*1024} sc1 lds")
    kv_issue(0)
    HA, TA, TT_ = H_, 61, 63
    a(f"s_lshl_b32 s{TA}, s{QBK}, 2")
    a(f"s_add_u32 s{TA}, s{TA}, s{E}")
    a(f"s_and_b32 s{TT_}, s{TA}, 31")
    a(f"v_add_u32 v18, {FA_OFF-FB_OFF:#x}, v18")
    a("v_lshrrev_b32 v20, 3, v0")
    a("v_mul_u32_u24 v20, 896, v20")
    a("v_and_b32 v19, 7, v0")
    a("v_bfe_u32 v21, v0, 4, 1")
    a("v_lshlrev_b32 v21, 2, v21")
    a("v_xor_b32 v19, v19, v21")
    a("v_lshl_add_u32 v20, v19, 4, v20")
    AQ, AKC, AVC, AKP, AVP = 24, 32, 40, 48, 56
    CCR, CPR, AO, AP, APP, T0, T1 = 64, 80, 96, 112, 120, 124, 125
    a(f"s_mov_b32 s3, {NEG_BIG:#x}")
    for r in range(16):
        a(f"v_mov_b32 v{CCR+r}, s3")
    for r in range(12, 16):
        a(f"v_mov_b32 v{CPR+r}, s3")
    for r in range(12):
        a(f"v_mov_b32 v{CPR+r}, 0")
    for r in range(16):
        c = (r & 3) + 8 * (r >> 2)
        a(f"s_mov_b32 exec_lo, {(0xFF << c) & 0xFFFFFFFF:#x}")
        a(f"s_mov_b32 exec_hi, {(0xFF << (c + 4)) & 0xFFFFFFFF:#x}")
        a(f"v_mov_b32 v{CCR+r}, 0")
    a(f"s_cmp_eq_u32 s{TT_}, 0")
    a("s_cbranch_scc1 H_NOPREV")
    for r in range(12, 16):
        a(f"s_mov_b32 exec_lo, {(1 << (r & 3)) - 1:#x}")
        a(f"s_mov_b32 exec_hi, {(1 << ((r & 3) + 4)) - 1:#x}")
        a(f"v_mov_b32 v{CPR+r}, 0")
    a.label("H_NOPREV")
    a("s_mov_b64 exec, -1")
    a(f"s_lshl_b32 s60, s{TR}, 7")
    a(f"s_lshl_b32 s3, s{M_}, 2")
    a("s_add_u32 s60, s60, s3")
    a(f"s_add_u32 s60, s60, {FA_OFF:#x}")
    a("s_waitcnt vmcnt(0)")
    a("s_barrier")
    stamp(a, 6)
    kv_issue(1)
    kv_issue(2)
    a("s_waitcnt vmcnt(8)")
    a("s_barrier")
    kv_issue(3)
    a(f"s_cmp_lg_u32 s{E}, 0")
    a("s_cbranch_scc1 H_NOFA")
    flag_store(a, 60)
    a.label("H_NOFA")
    a("s_waitcnt vmcnt(8)")
    a("s_barrier")
    kv_issue(4)
    a("s_waitcnt vmcnt(8)")
    a("s_barrier")
    kv_issue(5)
    a("s_waitcnt vmcnt(8)")
    a("s_barrier")
    kv_issue(6)
    shared_gpoll(1, 18, 0xffffffff, 0xffff, sleep=2)
    a("s_waitcnt vmcnt(8)")
    a(f"s_lshl_b32 s3, s{HA}, 6")
    a(f"s_add_u32 s3, s3, s{TA}")
    a("s_lshl_b32 s57, s3, 11")
    a(f"s_add_u32 s57, s57, {QA:#x}")
    a("s_lshl_b32 s58, s3, 12")
    a(f"s_add_u32 s58, s58, {KVA:#x}")
    a("s_sub_u32 s59, s58, 4096")
    a(f"s_cmp_eq_u32 s{TT_}, 0")
    a("s_cselect_b32 s59, s58, s59")
    for (reg, so, off) in ((AQ, 57, 0), (AQ + 4, 57, 1024), (AKC, 58, 0), (AKC + 4, 58, 1024), (AKP, 59, 0),
                           (AKP + 4, 59, 1024), (AVC, 58, 2048), (AVC + 4, 58, 3072), (AVP, 59, 3072)):
        a(f"buffer_load_dwordx4 {vr(reg,4)}, v1, {WS}, s{so} offen offset:{off} sc1")
    a("s_barrier")
    kv_issue(7)
    a("s_waitcnt vmcnt(11)")
    mfma(a, CCR, AKC, AQ)
    mfma(a, CPR, AKP, AQ)
    mfma(a, CCR, AKC + 4, AQ + 4)
    mfma(a, CPR, AKP + 4, AQ + 4)
    a("s_nop 15")
    a("s_nop 3")
    max16(a, T0, CCR, extra=[CPR + 12, CPR + 13, CPR + 14, CPR + 15])
    xhalf_max(a, T0, T1)
    rs = list(range(CCR, CCR + 16)) + list(range(CPR + 12, CPR + 16))
    for r in rs:
        a(f"v_sub_f32 v{r}, v{r}, v{T0}")
    for r in rs:
        a(f"v_exp_f32 v{r}, v{r}")
    a("s_nop 0")
    for j in range(8):
        a(f"v_cvt_pk_bf16_f32 v{AP+j}, v{CCR+2*j}, v{CCR+2*j+1}")
    a(f"v_mov_b32 v{APP}, 0")
    a(f"v_mov_b32 v{APP+1}, 0")
    a(f"v_cvt_pk_bf16_f32 v{APP+2}, v{CPR+12}, v{CPR+13}")
    a(f"v_cvt_pk_bf16_f32 v{APP+3}, v{CPR+14}, v{CPR+15}")
    a("s_waitcnt vmcnt(8)")
    a("s_nop 0")
    mfma(a, AO, AVC, AP, 0)
    mfma(a, AO, AVC + 4, AP + 4)
    mfma(a, AO, AVP, APP)
    a("s_nop 15")
    a("s_nop 3")
    a(f"v_mov_b32 v{T0}, v{AO+12}")
    a(f"v_mov_b32 v{T1}, v{AO+12}")
    a("s_nop 1")
    a(f"v_permlane32_swap_b32 v{T0}, v{T1}")
    a("s_nop 1")
    a(f"v_rcp_f32 v{T1}, v{T1}")
    a("s_nop 0")
    for r in range(16):
        a(f"v_mul_f32 v{AO+r}, v{AO+r}, v{T1}")
    for j in range(8):
        a(f"v_cvt_pk_bf16_f32 v{AP+j}, v{AO+2*j}, v{AO+2*j+1}")
    a("s_mov_b32 exec_lo, 0")
    a(f"v_mov_b32 v{AP+6}, 0")
    a(f"v_mov_b32 v{AP+7}, 0")
    a("s_mov_b32 exec_lo, -1")
    a(f"s_lshl_b32 s57, s{TA}, 4")
    a(f"s_add_u32 s57, s57, s{HA}")
    a("s_lshl_b32 s57, s57, 11")
    a(f"s_add_u32 s57, s57, {OFA:#x}")
    a(f"buffer_store_dwordx4 {vr(AP,4)}, v1, {WS}, s57 offen sc1")
    a(f"buffer_store_dwordx4 {vr(AP+4,4)}, v1, {WS}, s57 offen offset:1024 sc1")
    a(f"s_lshl_b32 s3, s{TT_}, 7")
    a(f"s_lshr_b32 s58, s{TA}, 5")
    a("s_lshl_b32 s58, s58, 4")
    a(f"s_add_u32 s58, s58, s{HA}")
    a("s_lshl_b32 s58, s58, 2")
    a("s_add_u32 s58, s58, s3")
    a(f"s_add_u32 s58, s58, {FOA_OFF:#x}")
    a("s_barrier")
    a("s_waitcnt vmcnt(0)")
    flag_store(a, 58)
    a("s_cmp_ge_u32 s2, 224")
    a("s_cbranch_scc1 H_NOPROJ")
    srd(a, 28, 8, WO_BYTES)
    srd(a, 32, 14, WO_BYTES)
    WOS = 50
    a(f"s_mul_i32 s{WOS}, s{E}, {64*896}")
    a(f"s_lshl_b32 s3, s{NB}, 7")
    a(f"s_add_u32 s{WOS}, s{WOS}, s3")

    def wo_issue(sr, slot, hf):
        for i in range(8):
            a(f"s_add_u32 s56, s{WOS}, {(hf*256 + i*8)*896}")
            a(f"s_add_u32 m0, s{LX}, {slot*SLOT + i*1024}")
            a("s_nop 0")
            a(f"buffer_load_dwordx4 v20, {sr}, s56 offen lds")

    a(f"s_lshl_b32 s3, s{MB}, 7")
    a(f"s_add_u32 s3, s3, {FOA_OFF:#x}")
    a("v_lshlrev_b32 v18, 2, v0")
    a("v_add_u32 v18, s3, v18")
    wo_issue("s[28:31]", 2, 0)
    a("s_barrier")
    wo_issue("s[28:31]", 3, 1)
    stamp(a, 7)
    shared_gpoll(2, 18, 0xffffffff, 0, sleep=2)
    stamp(a, 8)
    a("s_waitcnt vmcnt(0)")
    a("s_barrier")
    wo_issue("s[32:35]", 0, 0)
    a("s_barrier")
    wo_issue("s[32:35]", 1, 1)
    a("s_waitcnt vmcnt(0)")
    a("s_branch H_DONE")
    a.label("H_NOPROJ")
    a("s_barrier")
    a("s_barrier")
    a("s_barrier")
    a.label("H_DONE")
    stamp(a, 13)
    stamp(a, 14, True)
    stamp_flush(a, 15)
    a("s_endpgm")


HEADER = """; Kernarg layout for this problem (72 bytes, ptrs only, base s[0:1]):
"""


def main():
    out = sys.argv[1] if len(sys.argv) > 1 else f"cdna_kernels/{NAME}.s"
    a = Asm()
    a.raw(HEADER.rstrip())
    a.raw(f"; @launch grid=(256,1,1) block=(768,1,1) lds={LDS_BYTES}")
    a.raw('.amdgcn_target "amdgcn-amd-amdhsa--gfx950"')
    gen(a)
    open(out, "w").write(a.text())


if __name__ == "__main__":
    main()
```

```python
import math, struct, sys

NAME = "concat_heads__sliding_local_dilated__softmax_full_mha__prompt"
STAMP = "stamp" in sys.argv[2:]


def f32bits(x):
    return struct.unpack("<I", struct.pack("<f", x))[0]


CSCALE = (28 ** -0.5) * math.log2(math.e)
QB, KVB, QA, KVA, OFA, OFB = 0x000000, 0x200000, 0x600000, 0x800000, 0xC00000, 0xE00000
FL = 0x1000000
FB_OFF, FA_OFF, FOA_OFF, FOB_OFF = FL + 0x1000, FL + 0x2000, FL + 0x3000, FL + 0x5000
STAMP_OFF = 0x1100000
WS_BYTES = 0x1010000
X_BYTES = 2048 * 448 * 2
W_BYTES = 448 * 1344 * 2
WO_BYTES = 448 * 448 * 2
OUT_BYTES = 2048 * 896 * 2
NEG_BIG = f32bits(-3.0e38)
M_OFF = 64.0
SLOT = 32768
MREG = 4 * SLOT
LDS_BYTES = MREG + 32768
SY = MREG + 0x7F00
POLL_MAX = 1 << 18
LPOLL_MAX = 1 << 22


class Asm:
    def __init__(self):
        self.lines = []
        self.uid = 0

    def __call__(self, s):
        self.lines.append("    " + s)

    def label(self, l):
        self.lines.append(l + ":")

    def raw(self, s):
        self.lines.append(s)

    def new(self, p):
        self.uid += 1
        return f"{p}_{self.uid}"

    def text(self):
        return "\n".join(self.lines) + "\n"


def vr(a, n):
    return f"v[{a}:{a+n-1}]"


def srd(a, d, ptr, nbytes):
    a(f"s_mov_b32 s{d}, s{ptr}")
    a(f"s_and_b32 s{d+1}, s{ptr+1}, 0xffff")
    a(f"s_mov_b32 s{d+2}, {nbytes:#x}")
    a(f"s_mov_b32 s{d+3}, 0x20000")


def mfma(a, d, A, B, C=None):
    c = "0" if C == 0 else vr(d if C is None else C, 16)
    a(f"v_mfma_f32_32x32x16_bf16 {vr(d,16)}, {vr(A,4)}, {vr(B,4)}, {c}")


def stamp(a, i, real=False):
    if not STAMP:
        return
    a(f"{'s_memrealtime' if real else 's_memtime'} s[{64+2*i}:{65+2*i}]")
    a("s_waitcnt lgkmcnt(0)")


def stamp_flush(a, n):
    if not STAMP:
        return
    a("s_waitcnt lgkmcnt(0)")
    L = a.new("SF")
    a("s_cmp_lg_u32 s2, 37")
    a(f"s_cbranch_scc1 {L}")
    a(f"s_cmp_lg_u32 s{W_}, 0")
    a(f"s_cbranch_scc1 {L}")
    a("v_mov_b32 v0, 0")
    for i in range(n):
        base = 66 if i in (1, 14) else 64
        a(f"s_sub_u32 s60, s{64+2*i}, s{base}")
        a(f"v_mov_b32 v2, s60")
        a(f"global_store_dword v0, v2, s[18:19] offset:{4*i}")
        a("s_nop 1")
    a.label(L)


def max16(a, dst, S, extra=()):
    regs = [S + r for r in range(16)] + list(extra)
    a(f"v_max3_f32 v{dst}, v{regs[0]}, v{regs[1]}, v{regs[2]}")
    k = 3
    while k + 1 < len(regs):
        a(f"v_max3_f32 v{dst}, v{dst}, v{regs[k]}, v{regs[k+1]}")
        k += 2
    if k < len(regs):
        a(f"v_max_f32 v{dst}, v{dst}, v{regs[k]}")


def xhalf_max(a, m, t):
    a(f"v_mov_b32 v{t}, v{m}")
    a("s_nop 1")
    a(f"v_permlane32_swap_b32 v{m}, v{t}")
    a("s_nop 1")
    a(f"v_max_f32 v{m}, v{m}, v{t}")


WS = "s[24:27]"
W_, M_, TR, H_, QBK, MB, NB, TAG = 40, 41, 42, 43, 44, 45, 46, 47
VSY = 164
VTAG = 165
VZ = 166


def gpoll(a, vaddr, mlo, mhi, vtmp, sleep=4):
    L = a.new("GP")
    a(f"s_mov_b32 exec_lo, {mlo:#x}")
    a(f"s_mov_b32 exec_hi, {mhi:#x}")
    a(f"s_mov_b32 s62, {POLL_MAX}")
    a.label(L)
    a(f"buffer_load_dword v{vtmp}, v{vaddr}, {WS}, 0 offen sc1")
    a("s_waitcnt vmcnt(0)")
    a(f"v_cmp_ne_u32 vcc, s{TAG}, v{vtmp}")
    a("s_sub_u32 s62, s62, 1")
    a("s_nop 3")
    a(f"s_cbranch_vccz {L}_OK")
    a(f"s_sleep {sleep}")
    a("s_cmp_lg_u32 s62, 0")
    a(f"s_cbranch_scc1 {L}")
    a.label(L + "_OK")
    a("s_mov_b64 exec, -1")


def lpoll(a, off, nwords, thr, t, sleep=1):
    L = a.new("LP")
    a(f"s_mov_b32 s62, {LPOLL_MAX}")
    a.label(L)
    if nwords == 1:
        a(f"ds_read_b32 v{t}, v{VSY} offset:{off}")
        a("s_waitcnt lgkmcnt(0)")
    else:
        a(f"ds_read_b128 {vr(t,4)}, v{VSY} offset:{off}")
        if nwords == 8:
            a(f"ds_read_b128 {vr(t+4,4)}, v{VSY} offset:{off+16}")
        a("s_waitcnt lgkmcnt(0)")
        a(f"v_min3_u32 v{t}, v{t}, v{t+1}, v{t+2}")
        if nwords == 8:
            a(f"v_min3_u32 v{t}, v{t}, v{t+3}, v{t+4}")
            a(f"v_min3_u32 v{t}, v{t}, v{t+5}, v{t+6}")
            a(f"v_min_u32 v{t}, v{t}, v{t+7}")
        else:
            a(f"v_min_u32 v{t}, v{t}, v{t+3}")
    a(f"v_cmp_gt_u32 vcc, {thr}, v{t}")
    a("s_sub_u32 s62, s62, 1")
    a("s_nop 3")
    a(f"s_cbranch_vccz {L}_OK")
    if sleep:
        a(f"s_sleep {sleep}")
    a("s_cmp_lg_u32 s62, 0")
    a(f"s_cbranch_scc1 {L}")
    a.label(L + "_OK")


def flag_store(a, soff):
    a("s_mov_b64 exec, 1")
    a(f"buffer_store_dword v{VTAG}, v{VZ}, {WS}, s{soff} offen sc1")
    a("s_mov_b64 exec, -1")


def gen(a):
    kname = NAME + "_kernel"
    a.raw(".text")
    a.raw(f".globl {kname}")
    a.raw(".p2align 8")
    a.raw(f".type {kname},@function")
    a.label(kname)
    a("s_cmp_ge_u32 s2, 256")
    a("s_cbranch_scc1 L_END")
    a("s_load_dwordx16 s[4:19], s[0:1], 0")
    a("s_load_dwordx2 s[20:21], s[0:1], 64")
    a("v_lshrrev_b32 v1, 6, v0")
    a("v_and_b32 v0, 63, v0")
    a(f"v_readfirstlane_b32 s{W_}, v1")
    a("v_lshlrev_b32 v1, 4, v0")
    a(f"s_and_b32 s{M_}, s2, 1")
    a(f"s_lshl_b32 s{M_}, s{M_}, 3")
    a("s_bfe_u32 s3, s2, 0x30003")
    a(f"s_add_u32 s{M_}, s{M_}, s3")
    a(f"s_bfe_u32 s{TR}, s2, 0x20001")
    a(f"s_lshl_b32 s{TR}, s{TR}, 2")
    a("s_lshr_b32 s3, s2, 6")
    a(f"s_add_u32 s{TR}, s{TR}, s3")
    a(f"s_and_b32 s{H_}, s2, 15")
    a(f"s_lshr_b32 s{QBK}, s2, 4")
    a(f"s_and_b32 s{MB}, s2, 7")
    a(f"s_lshl_b32 s{MB}, s{MB}, 2")
    a("s_bfe_u32 s3, s2, 0x20003")
    a(f"s_add_u32 s{MB}, s{MB}, s3")
    a(f"s_lshr_b32 s{NB}, s2, 5")
    a(f"v_mov_b32 v{VSY}, {SY:#x}")
    a(f"v_mov_b32 v{VZ}, 0")
    a("s_waitcnt lgkmcnt(0)")
    stamp(a, 0)
    stamp(a, 1, True)
    a(f"s_add_u32 s22, s20, {FL:#x}")
    a("s_addc_u32 s23, s21, 0")
    a(f"s_load_dword s{TAG}, s[22:23], 0")
    srd(a, 24, 20, WS_BYTES)
    a(f"s_cmp_ge_u32 s{W_}, 8")
    a("s_cbranch_scc1 L_HELPER")
    gen_compute(a)
    gen_helper(a)
    a.label("L_END")
    a("s_endpgm")
    a.raw('.section .rodata,"a"')
    a.raw(".p2align 6")
    a.raw(f".amdhsa_kernel {kname}")
    a.raw("  .amdhsa_next_free_vgpr 168")
    a.raw("  .amdhsa_next_free_sgpr 100")
    a.raw("  .amdhsa_accum_offset 168")
    a.raw("  .amdhsa_group_segment_fixed_size 0")
    a.raw("  .amdhsa_kernarg_size 72")
    a.raw("  .amdhsa_user_sgpr_count 2")
    a.raw("  .amdhsa_user_sgpr_kernarg_segment_ptr 1")
    a.raw("  .amdhsa_system_sgpr_workgroup_id_x 1")
    a.raw(".end_amdhsa_kernel")


def tag_finish(a):
    a("s_waitcnt lgkmcnt(0)")
    a(f"s_mul_i32 s{TAG}, s{TAG}, 0x9e3779b1")
    a(f"s_add_u32 s{TAG}, s{TAG}, 0x7f4a7c15")
    a(f"v_mov_b32 v{VTAG}, s{TAG}")


def gen_compute(a):
    U, G, N, TT, QBASE, KVBASE = 48, 49, 50, 51, 52, 53
    VFREE, VCNT = 163, 162
    a(f"s_and_b32 s{U}, s{W_}, 3")
    a(f"s_lshr_b32 s{G}, s{W_}, 2")
    a(f"s_cmp_lg_u32 s{W_}, 0")
    a("s_cbranch_scc1 C_NOZ")
    a("v_lshlrev_b32 v2, 2, v0")
    a(f"v_add_u32 v2, {SY:#x}, v2")
    a(f"ds_write_b32 v2, v{VZ}")
    a.label("C_NOZ")
    a(f"s_lshl_b32 s3, s{W_}, 2")
    a(f"s_add_u32 s3, s3, {SY+16:#x}")
    a(f"v_mov_b32 v{VFREE}, s3")
    a(f"v_mov_b32 v{VCNT}, 0")
    a("v_and_b32 v16, 31, v0")
    a(f"s_lshl_b32 s3, s{U}, 5")
    a("v_add_u32 v16, s3, v16")
    a("v_bfe_u32 v17, v16, 1, 3")
    a("v_lshrrev_b32 v18, 5, v0")
    a("v_lshlrev_b32 v16, 7, v16")
    for ks in range(4):
        a(f"v_or_b32 v19, {2*ks}, v18")
        a("v_xor_b32 v19, v19, v17")
        a(f"v_lshl_add_u32 v{8+ks}, v19, 4, v16")
    a("v_bfe_u32 v19, v0, 2, 2")
    a("v_lshl_add_u32 v19, v18, 3, v19")
    a("v_mul_u32_u24 v19, 192, v19")
    a("v_bfe_u32 v20, v0, 4, 1")
    a("v_lshl_add_u32 v19, v20, 5, v19")
    a("v_and_b32 v20, 3, v0")
    a("v_lshl_add_u32 v19, v20, 3, v19")
    a(f"s_and_b32 s3, s{TR}, 1")
    a("s_lshl_b32 s3, s3, 3")
    a(f"s_mul_i32 s54, s{G}, 112")
    a("s_add_u32 s3, s3, s54")
    a("s_add_u32 s3, s3, 16384")
    a("v_add_u32 v12, s3, v19")
    a(f"s_mul_i32 s54, s{TR}, 3")
    a(f"s_lshl_b32 s3, s{G}, 1")
    a("s_add_u32 s54, s54, s3")
    a(f"s_lshl_b32 s{TT}, s{M_}, 2")
    a(f"s_add_u32 s{TT}, s{TT}, s{U}")
    a(f"s_mov_b32 s{QBASE}, {QB:#x}")
    a(f"s_mov_b32 s{KVBASE}, {KVB:#x}")
    a(f"s_mov_b32 s{N}, 0")
    a(f"s_lshl_b32 s63, s{TR}, 7")
    a(f"s_lshl_b32 s3, s{M_}, 2")
    a("s_add_u32 s63, s63, s3")
    XF = [24, 72]
    WF = [40, 88]
    ACC = [120, 136]
    PK = 152
    TMP = 16

    def reads(buf, ns):
        for ks in range(4):
            a(f"ds_read_b128 {vr(XF[buf]+4*ks,4)}, v{8+ks}")
            for i in range(ns):
                for t in range(2):
                    off = (16 * ks + 4 * t) * 192 + i * 56
                    a(f"ds_read_b64_tr_b16 {vr(WF[buf]+8*ks+4*i+2*t,2)}, v12 offset:{off}")

    def mfmas(types, buf):
        for ks in range(4):
            for i, ty in enumerate(types):
                if ty == 'T':
                    mfma(a, ACC[i], WF[buf] + 8 * ks + 4 * i, XF[buf] + 4 * ks)
                else:
                    mfma(a, ACC[i], XF[buf] + 4 * ks, WF[buf] + 8 * ks + 4 * i)

    def advance():
        for r in range(8, 13):
            a(f"v_add_u32 v{r}, {SLOT}, v{r}")
        for r in range(8, 13):
            a(f"v_and_b32 v{r}, {4*SLOT-1:#x}, v{r}")
        a(f"v_add_u32 v{VCNT}, 1, v{VCNT}")

    def done_signal(doff, foff):
        L = a.new("DS")
        a("s_waitcnt vmcnt(0)")
        a(f"v_mov_b32 v{TMP}, 1")
        a("s_mov_b64 exec, 1")
        a(f"ds_add_rtn_u32 v{TMP+1}, v{VSY}, v{TMP} offset:{doff}")
        a("s_waitcnt lgkmcnt(0)")
        a(f"v_readfirstlane_b32 s3, v{TMP+1}")
        a("s_mov_b64 exec, -1")
        a("s_nop 3")
        a("s_cmp_lg_u32 s3, 7")
        a(f"s_cbranch_scc1 {L}")
        a(f"s_add_u32 s3, s63, {foff:#x}")
        flag_store(a, 3)
        a.label(L)

    a(f"s_cmp_eq_u32 s{G}, 0")
    a("s_cbranch_scc0 C_SEL1")
    a(f"s_cmp_le_u32 s{TR}, 10")
    a("s_cbranch_scc1 C_G_TT")
    a("s_branch C_G_NN")
    a.label("C_SEL1")
    a(f"s_cmp_le_u32 s{TR}, 9")
    a("s_cbranch_scc1 C_G_T")
    a("s_branch C_G_N")

    for types in ("TT", "NN", "T", "N"):
        ns = len(types)
        L = f"C_G_{types}"
        a.label(L)
        for i in range(ns):
            for r in range(16):
                a(f"v_mov_b32 v{ACC[i]+r}, 0")
        for r in range(16):
            a(f"v_mov_b32 v{XF[1]+r}, 0")
        for r in range(32):
            a(f"v_mov_b32 v{WF[1]+r}, 0")
        stamp(a, 2)
        a.label(L + "_LOOP")
        a("s_barrier")
        reads(0, ns)
        mfmas(types, 1)
        advance()
        a(f"s_cmp_lg_u32 s{N}, 8")
        a(f"s_cbranch_scc1 {L}_NOW")
        a("s_waitcnt vmcnt(0)")
        a.label(L + "_NOW")
        a("s_waitcnt lgkmcnt(0)")
        a("s_barrier")
        reads(1, ns)
        mfmas(types, 0)
        advance()
        a(f"s_cmp_eq_u32 s{N}, 6")
        a(f"s_cbranch_scc1 {L}_EPI")
        a.label(L + "_BACK")
        a("s_waitcnt lgkmcnt(0)")
        a(f"s_add_u32 s{N}, s{N}, 2")
        a(f"s_cmp_lt_u32 s{N}, 14")
        a(f"s_cbranch_scc1 {L}_LOOP")
        mfmas(types, 1)
        a.label(L + "_EPI")
        a("s_nop 15")
        for i, ty in enumerate(types):
            A = ACC[i]
            a(f"s_add_u32 s56, s54, {i}")
            a("s_lshr_b32 s57, s56, 4")
            a("s_and_b32 s56, s56, 15")
            a("s_lshl_b32 s56, s56, 6")
            a(f"s_add_u32 s56, s56, s{TT}")
            if ty == 'T':
                a("s_lshl_b32 s58, s56, 11")
                a(f"s_add_u32 s58, s58, s{QBASE}")
                a("s_lshl_b32 s59, s56, 12")
                a(f"s_add_u32 s59, s59, s{KVBASE}")
                a(f"s_mov_b32 s60, {f32bits(CSCALE):#x}")
                a("s_cmp_eq_u32 s57, 0")
                a("s_cselect_b32 s58, s58, s59")
                a("s_cselect_b32 s60, s60, 1.0")
                for r in range(16):
                    a(f"v_mul_f32 v{A+r}, s60, v{A+r}")
                for j in range(8):
                    a(f"v_cvt_pk_bf16_f32 v{PK+j}, v{A+2*j}, v{A+2*j+1}")
                a("s_mov_b32 exec_lo, 0")
                a(f"v_mov_b32 v{PK+6}, 0")
                a(f"v_mov_b32 v{PK+7}, 0")
                a("s_mov_b32 exec_lo, -1")
            else:
                a("s_lshl_b32 s58, s56, 12")
                a(f"s_add_u32 s58, s58, s{KVBASE}")
                a("s_add_u32 s58, s58, 2048")
                for j in range(8):
                    a(f"v_cvt_pk_bf16_f32 v{PK+j}, v{A+2*j}, v{A+2*j+1}")
                a("s_mov_b32 exec_lo, 0xe0000000")
                a("s_mov_b32 exec_hi, 0xe0000000")
                for j in range(8):
                    a(f"v_mov_b32 v{PK+j}, 0")
                a("s_mov_b32 exec_lo, 0x10000000")
                a("s_mov_b32 exec_hi, 0x10000000")
                for j in range(8):
                    a(f"v_mov_b32 v{PK+j}, 0x3f803f80")
                a("s_mov_b64 exec, -1")
            a(f"buffer_store_dwordx4 {vr(PK,4)}, v1, {WS}, s58 offen sc1")
            a(f"buffer_store_dwordx4 {vr(PK+4,4)}, v1, {WS}, s58 offen offset:1024 sc1")
            a("s_nop 1")
        a(f"s_cmp_eq_u32 s{N}, 14")
        a("s_cbranch_scc1 C_ATT")
        stamp(a, 4)
        for i in range(ns):
            for r in range(16):
                a(f"v_mov_b32 v{ACC[i]+r}, 0")
        a(f"s_and_b32 s3, s{U}, 1")
        a("s_lshl_b32 s3, s3, 5")
        a(f"s_lshl_b32 s{TT}, s{M_}, 1")
        a(f"s_add_u32 s{TT}, s{TT}, s3")
        a(f"s_lshr_b32 s3, s{U}, 1")
        a(f"s_add_u32 s{TT}, s{TT}, s3")
        a(f"s_mov_b32 s{QBASE}, {QA:#x}")
        a(f"s_mov_b32 s{KVBASE}, {KVA:#x}")
        a(f"s_branch {L}_BACK")

    Q0, Q1, KF, VF, PA_, PB_, T0, T1 = 4, 8, 12, 20, 28, 36, 44, 45
    O, CM, SA, SB = 48, 64, 80, 96
    OFR = 112
    FU = 144
    VCUR, VNXT = 2, 3
    VX1, VX2, VPXO, VPXP = 152, 153, 154, 155
    VW0, VW1, VOA, VOB, VEX, VFOB = 156, 157, 158, 159, 160, 161
    QT, PT, KQ = 51, 52, 53
    a.label("C_ATT")
    stamp(a, 5)
    tag_finish(a)
    a(f"s_lshl_b32 s{QT}, s{QBK}, 2")
    a(f"s_add_u32 s{QT}, s{QT}, s{U}")
    a(f"s_lshl_b32 s3, s{U}, 11")
    a(f"s_add_u32 s3, s3, {MREG}")
    a("v_add_u32 v46, s3, v1")
    a(f"s_lshl_b32 s3, s{G}, 14")
    a(f"s_add_u32 s3, s3, {2*SLOT}")
    a(f"v_add_u32 v{VCUR}, s3, v1")
    a(f"v_add_u32 v{VNXT}, {SLOT}, v{VCUR}")
    a(f"v_add_u32 v47, {2*SLOT}, v1")
    for r in range(16):
        a(f"v_mov_b32 v{O+r}, 0")
    for r in range(4):
        a(f"v_mov_b32 v{PB_+4+r}, 0")
        a(f"v_mov_b32 v{VF+4+r}, 0")
    a(f"s_and_b32 s{PT}, s{W_}, 1")
    a(f"s_lshr_b32 s{KQ}, s{W_}, 1")
    a(f"s_lshl_b32 s3, s{U}, 12")
    a(f"s_add_u32 s3, s3, {MREG+8192}")
    a(f"v_add_u32 v{VX1}, s3, v1")
    a(f"s_lshl_b32 s3, s{U}, 8")
    a(f"s_add_u32 s3, s3, {MREG+24576}")
    a(f"v_lshlrev_b32 v{VX2}, 2, v0")
    a(f"v_add_u32 v{VX2}, s3, v{VX2}")
    a(f"s_lshl_b32 s3, s{W_}, 2")
    a(f"s_add_u32 s3, s3, {SY+64:#x}")
    a(f"v_mov_b32 v{VPXO}, s3")
    a(f"v_xor_b32 v{VPXP}, 16, v{VPXO}")
    a("v_lshrrev_b32 v6, 5, v0")
    a("v_bfe_u32 v7, v0, 2, 2")
    a("v_lshl_add_u32 v6, v6, 2, v7")
    a("v_lshlrev_b32 v6, 7, v6")
    a("v_bfe_u32 v7, v0, 4, 1")
    a("v_lshl_add_u32 v6, v7, 5, v6")
    a("v_and_b32 v7, 3, v0")
    a("v_lshl_add_u32 v6, v7, 3, v6")
    a("v_bfe_u32 v7, v0, 3, 1")
    a(f"v_lshl_add_u32 v{VW0}, v7, 6, v6")
    a(f"s_mul_i32 s3, s{KQ}, {4*28*128}")
    a(f"v_add_u32 v{VW0}, s3, v{VW0}")
    a(f"v_xor_b32 v{VW1}, 64, v{VW0}")
    a(f"s_mul_i32 s3, s{PT}, {4*3*2048}")
    a(f"v_add_u32 v{VEX}, s3, v1")
    srd(a, 36, 16, OUT_BYTES)
    a("v_and_b32 v11, 31, v0")
    a(f"v_lshlrev_b32 v{VOA}, 1, v11")
    a(f"s_lshl_b32 s3, s{MB}, 6")
    a(f"s_add_u32 s60, s3, s{PT}")
    a(f"v_add_u32 v{VOA}, s60, v{VOA}")
    a(f"s_lshl_b32 s60, s{PT}, 5")
    a("s_add_u32 s60, s60, s3")
    a(f"v_add_u32 v{VOB}, s60, v11")
    a(f"v_mul_u32_u24 v{VOA}, 1792, v{VOA}")
    a(f"v_mul_u32_u24 v{VOB}, 1792, v{VOB}")
    a("v_lshrrev_b32 v11, 5, v0")
    a(f"v_lshl_add_u32 v{VOA}, v11, 4, v{VOA}")
    a(f"v_lshl_add_u32 v{VOB}, v11, 4, v{VOB}")
    a(f"s_lshl_b32 s60, s{NB}, 7")
    a(f"s_lshl_b32 s3, s{KQ}, 5")
    a("s_add_u32 s60, s60, s3")
    a("s_add_u32 s61, s60, 896")
    a(f"s_lshl_b32 s3, s{MB}, 1")
    a(f"s_add_u32 s3, s3, s{PT}")
    a("s_lshl_b32 s59, s3, 15")
    a("s_lshl_b32 s3, s3, 7")
    a(f"s_lshl_b32 s56, s{KQ}, 5")
    a("s_add_u32 s3, s3, s56")
    a(f"s_add_u32 s3, s3, {FOB_OFF:#x}")
    a(f"v_lshlrev_b32 v{VFOB}, 2, v0")
    a(f"v_add_u32 v{VFOB}, s3, v{VFOB}")
    a(f"s_lshl_b32 s56, s{KQ}, 13")
    a("s_add_u32 s59, s59, s56")
    a(f"s_add_u32 s59, s59, {OFB:#x}")
    a(f"s_lshl_b32 s58, s{PT}, 5")
    a(f"s_add_u32 s58, s58, s{MB}")
    a("s_lshl_b32 s58, s58, 15")
    a("s_add_u32 s58, s58, s56")
    a(f"s_add_u32 s58, s58, {OFA:#x}")
    a(f"s_lshl_b32 s57, s{QT}, 4")
    a(f"s_add_u32 s57, s57, s{H_}")
    a("s_lshl_b32 s57, s57, 1")
    a(f"s_add_u32 s57, s57, s{G}")
    a("s_lshl_b32 s56, s57, 2")
    a(f"s_add_u32 s56, s56, {FOB_OFF:#x}")
    a("s_lshl_b32 s57, s57, 10")
    a(f"s_add_u32 s57, s57, {OFB:#x}")
    a("s_barrier")
    stamp(a, 6)
    a(f"ds_read_b128 {vr(Q0,4)}, v46")
    a(f"ds_read_b128 {vr(Q1,4)}, v46 offset:1024")
    a(f"ds_read_b128 {vr(KF,4)}, v47")
    a(f"ds_read_b128 {vr(KF+4,4)}, v47 offset:1024")
    a("s_waitcnt lgkmcnt(0)")
    mfma(a, SB, KF, Q0, 0)
    mfma(a, SB, KF + 4, Q1)
    a(f"ds_read_b128 {vr(KF,4)}, v{VCUR}")
    a(f"ds_read_b128 {vr(KF+4,4)}, v{VCUR} offset:1024")
    a("s_nop 15")
    max16(a, T0, SB)
    xhalf_max(a, T0, T1)
    a(f"v_add_f32 v{T0}, {f32bits(M_OFF):#x}, v{T0}")
    for r in range(16):
        a(f"v_sub_f32 v{CM+r}, 0, v{T0}")
    a("s_waitcnt lgkmcnt(0)")
    a("s_nop 0")
    mfma(a, SA, KF, Q0, CM)
    mfma(a, SA, KF + 4, Q1)
    a(f"ds_read_b128 {vr(KF,4)}, v{VCUR} offset:4096")
    a(f"ds_read_b128 {vr(KF+4,4)}, v{VCUR} offset:5120")
    a(f"ds_read_b128 {vr(VF,4)}, v{VCUR} offset:2048")
    a("s_mov_b32 s55, 16")
    a("s_mov_b32 s54, 0")
    a("s_nop 15")

    def step(j, sc, sn):
        PA = PA_ if j % 2 == 0 else PB_
        PB = PB_ if j % 2 == 0 else PA_
        VB = VF + 4
        if j == 2:
            a("s_waitcnt vmcnt(0)")
            a("s_barrier")
        a("s_waitcnt lgkmcnt(1)")
        mfma(a, sn, KF, Q0, CM)
        for r in range(0, 4):
            a(f"v_exp_f32 v{sc+r}, v{sc+r}")
        mfma(a, sn, KF + 4, Q1)
        kb, ko = (VCUR, (j + 2) * 4096) if j + 2 < 4 else (VNXT, (j + 2 - 4) * 4096)
        a(f"ds_read_b128 {vr(KF,4)}, v{kb} offset:{ko}")
        a(f"ds_read_b128 {vr(KF+4,4)}, v{kb} offset:{ko+1024}")
        for r in range(4, 8):
            a(f"v_exp_f32 v{sc+r}, v{sc+r}")
        a(f"v_cvt_pk_bf16_f32 v{PA+0}, v{sc+0}, v{sc+1}")
        a(f"v_cvt_pk_bf16_f32 v{PA+1}, v{sc+2}, v{sc+3}")
        mfma(a, O, VB, PB + 4)
        a(f"ds_read_b128 {vr(VB,4)}, v{VCUR} offset:{j*4096+3072}")
        for r in range(8, 12):
            a(f"v_exp_f32 v{sc+r}, v{sc+r}")
        a(f"v_cvt_pk_bf16_f32 v{PA+2}, v{sc+4}, v{sc+5}")
        a(f"v_cvt_pk_bf16_f32 v{PA+3}, v{sc+6}, v{sc+7}")
        for r in range(12, 14):
            a(f"v_exp_f32 v{sc+r}, v{sc+r}")
        a("s_waitcnt lgkmcnt(3)")
        mfma(a, O, VF, PA)
        vb, vo = (VCUR, (j + 1) * 4096 + 2048) if j + 1 < 4 else (VNXT, 2048)
        a(f"ds_read_b128 {vr(VF,4)}, v{vb} offset:{vo}")
        for r in range(14, 16):
            a(f"v_exp_f32 v{sc+r}, v{sc+r}")
        for q in range(4, 8):
            a(f"v_cvt_pk_bf16_f32 v{PA+q}, v{sc+2*q}, v{sc+2*q+1}")

    a.label("C_LOOP")
    step(0, SA, SB)
    step(1, SB, SA)
    step(2, SA, SB)
    step(3, SB, SA)
    a(f"v_mov_b32 v{VCUR}, v{VNXT}")
    a(f"v_add_u32 v{VNXT}, {SLOT}, v{VNXT}")
    a(f"v_and_b32 v{VNXT}, {4*SLOT-1:#x}, v{VNXT}")
    a("s_add_u32 s54, s54, 1")
    a("s_cmp_lt_u32 s54, 8")
    a("s_cbranch_scc1 C_LOOP")
    a("s_waitcnt lgkmcnt(0)")
    mfma(a, O, VF + 4, PB_ + 4)
    stamp(a, 7)
    a("s_cmp_ge_u32 s2, 224")
    a("s_cbranch_scc1 C_NOOA")
    a("s_add_u32 s3, s58, 4096")
    for i in range(8):
        a(f"buffer_load_dwordx4 {vr(OFR+4*i,4)}, v1, {WS}, s{58 if i < 4 else 3} offen offset:{(i%4)*1024} sc1")
    a.label("C_NOOA")
    a(f"v_mov_b32 v{T1}, 1")
    a("s_nop 12")
    a(f"s_cmp_eq_u32 s{G}, 1")
    a("s_cbranch_scc1 C_G1")
    a(f"ds_write_b128 v{VX1}, {vr(O+8,4)}")
    a(f"ds_write_b128 v{VX1}, {vr(O+12,4)} offset:1024")

    def px_wait():
        a("s_waitcnt lgkmcnt(0)")
        a("s_barrier")

    def px_wait_old():
        L = a.new("PX")
        a(f"s_mov_b32 s62, {LPOLL_MAX}")
        a.label(L)
        a(f"ds_read_b32 v{FU}, v{VPXP}")
        a("s_waitcnt lgkmcnt(0)")
        a(f"v_cmp_eq_u32 vcc, 0, v{FU}")
        a("s_sub_u32 s62, s62, 1")
        a("s_nop 3")
        a(f"s_cbranch_vccz {L}_OK")
        a("s_cmp_lg_u32 s62, 0")
        a(f"s_cbranch_scc1 {L}")
        a.label(L + "_OK")

    px_wait()
    a(f"ds_read_b128 {vr(SA,4)}, v{VX1} offset:2048")
    a(f"ds_read_b128 {vr(SA+4,4)}, v{VX1} offset:3072")
    a(f"ds_read_b32 v{T0}, v{VX2}")
    a("s_waitcnt lgkmcnt(0)")
    a(f"v_add_f32 v{T0}, v{T0}, v{O+12}")
    for r in range(8):
        a(f"v_add_f32 v{SA+r}, v{SA+r}, v{O+r}")
    a("s_branch C_FIN")
    a.label("C_G1")
    a(f"ds_write_b128 v{VX1}, {vr(O,4)} offset:2048")
    a(f"ds_write_b128 v{VX1}, {vr(O+4,4)} offset:3072")
    a(f"ds_write_b32 v{VX2}, v{O+12}")
    px_wait()
    a(f"ds_read_b128 {vr(SA,4)}, v{VX1}")
    a(f"ds_read_b128 {vr(SA+4,4)}, v{VX1} offset:1024")
    a("s_waitcnt lgkmcnt(0)")
    for r in range(8):
        a(f"v_add_f32 v{SA+r}, v{SA+r}, v{O+8+r}")
    a(f"v_mov_b32 v{T0}, v{SA+4}")
    a.label("C_FIN")
    a(f"v_mov_b32 v{T1}, v{T0}")
    a("s_nop 1")
    a(f"v_permlane32_swap_b32 v{T0}, v{T1}")
    a("s_nop 1")
    a(f"v_mul_f32 v{T0}, 0, v{T1}")
    for r in range(8):
        a(f"v_fma_f32 v{T0}, v{SA+r}, 0, v{T0}")
    a(f"v_cmp_u_f32 vcc, v{T0}, v{T0}")
    a("s_nop 4")
    a("s_cbranch_vccnz C_FALLBACK")
    a.label("C_STORE")
    a(f"v_rcp_f32 v{T1}, v{T1}")
    a("s_nop 0")
    for r in range(8):
        a(f"v_mul_f32 v{SA+r}, v{SA+r}, v{T1}")
    for j in range(4):
        a(f"v_cvt_pk_bf16_f32 v{4+j}, v{SA+2*j}, v{SA+2*j+1}")
    a(f"s_cmp_eq_u32 s{G}, 0")
    a("s_cbranch_scc1 C_NOPAD")
    a("s_mov_b32 exec_lo, 0")
    a("v_mov_b32 v6, 0")
    a("v_mov_b32 v7, 0")
    a("s_mov_b32 exec_lo, -1")
    a.label("C_NOPAD")
    a(f"buffer_store_dwordx4 v[4:7], v1, {WS}, s57 offen sc1")
    stamp(a, 8)
    WOF = 16
    PACC = 80
    XR = 144
    a("s_cmp_ge_u32 s2, 224")
    a("s_cbranch_scc0 C_PROJ")
    a("s_waitcnt vmcnt(0)")
    flag_store(a, 56)
    a("s_branch C_DONE")
    a.label("C_PROJ")

    def wo_reads(base):
        for s in range(8):
            hd, f = s // 2, s % 2
            for nt, b in enumerate((8, 9)):
                for t in range(2):
                    off = (28 * hd + 16 * f + 8 * t) * 128
                    a(f"ds_read_b64_tr_b16 {vr(WOF+8*s+4*nt+2*t,2)}, v{b} offset:{off}")

    def proj_mfma(wait_vm):
        for s in range(8):
            if wait_vm:
                a(f"s_waitcnt vmcnt({7-s})")
            for nt in range(2):
                mfma(a, PACC + 16 * nt, WOF + 8 * s + 4 * nt, OFR + 4 * s, 0 if s == 0 else None)

    def part_write(tag, base):
        a(f"v_add_u32 v10, {base:#x}, v{VEX}")
        for kq in range(4):
            a(f"s_cmp_lg_u32 s{KQ}, {kq}")
            a(f"s_cbranch_scc1 C_PX{tag}{kq}")
            for d in range(4):
                if d == kq:
                    continue
                idx = kq if kq < d else kq - 1
                off = (d * 3 + idx) * 2048
                a(f"ds_write_b128 v10, {vr(PACC+8*d,4)} offset:{off}")
                a(f"ds_write_b128 v10, {vr(PACC+8*d+4,4)} offset:{off+1024}")
            if kq:
                for r in range(8):
                    a(f"v_mov_b32 v{PACC+r}, v{PACC+8*kq+r}")
            a.label(f"C_PX{tag}{kq}")
        a(f"s_mul_i32 s3, s{KQ}, {3*2048}")
        a("v_add_u32 v11, s3, v10")

    def part_final(vout, sout):
        R = PACC + 8
        for idx in range(3):
            a(f"ds_read_b128 {vr(R+8*idx,4)}, v11 offset:{idx*2048}")
            a(f"ds_read_b128 {vr(R+8*idx+4,4)}, v11 offset:{idx*2048+1024}")
        for idx in range(3):
            a(f"s_waitcnt lgkmcnt({4-2*idx})")
            for r in range(8):
                a(f"v_add_f32 v{PACC+r}, v{PACC+r}, v{R+8*idx+r}")
        for j in range(4):
            a(f"v_cvt_pk_bf16_f32 v{12+j}, v{PACC+2*j}, v{PACC+2*j+1}")
        a("s_nop 1")
        a("v_permlane32_swap_b32 v12, v14")
        a("v_permlane32_swap_b32 v13, v15")
        a("s_nop 1")
        a(f"buffer_store_dwordx4 v[12:15], v{vout}, s[36:39], s{sout} offen")

    a(f"v_add_u32 v8, {2*SLOT}, v{VW0}")
    a(f"v_add_u32 v9, {2*SLOT}, v{VW1}")
    wo_reads(0)
    a("s_waitcnt vmcnt(0)")
    flag_store(a, 56)
    a("s_waitcnt lgkmcnt(0)")
    stamp(a, 9)
    proj_mfma(False)
    a("s_barrier")
    a("s_nop 13")
    part_write("A", 2 * SLOT)
    a(f"v_mov_b32 v8, v{VW0}")
    a(f"v_mov_b32 v9, v{VW1}")
    wo_reads(0)
    a("s_waitcnt lgkmcnt(0)")
    a("s_barrier")
    part_final(VOA, 60)
    stamp(a, 10)
    gpoll(a, VFOB, 0xff, 0, FU, sleep=1)
    stamp(a, 11)
    a("s_add_u32 s3, s59, 4096")
    for i in range(8):
        a(f"buffer_load_dwordx4 {vr(OFR+4*i,4)}, v1, {WS}, s{59 if i < 4 else 3} offen offset:{(i%4)*1024} sc1")
    for s in range(8):
        a(f"s_waitcnt vmcnt({7-s})")
        for nt in range(2):
            mfma(a, PACC + 16 * nt, WOF + 8 * s + 4 * nt, OFR + 4 * s, 0 if s == 0 else None)
    a("s_nop 15")
    a("s_nop 3")
    part_write("B", 112 * 1024)
    a("s_waitcnt lgkmcnt(0)")
    a("s_barrier")
    part_final(VOB, 61)
    a(f"s_or_b32 s3, s2, s{W_}")
    a("s_cmp_lg_u32 s3, 0")
    a("s_cbranch_scc1 C_DONE")
    a(f"s_mov_b32 s3, {FL:#x}")
    flag_store(a, 3)
    a.label("C_DONE")
    stamp(a, 12)
    if STAMP:
        a("s_waitcnt vmcnt(0)")
    stamp(a, 13)
    stamp(a, 14, True)
    stamp_flush(a, 15)
    a("s_endpgm")

    a.label("C_FALLBACK")
    a(f"s_lshl_b32 s62, s{H_}, 18")
    a(f"s_add_u32 s62, s62, {KVB:#x}")
    a(f"s_mov_b32 s3, {NEG_BIG:#x}")
    a(f"v_mov_b32 v{T0}, s3")
    a("s_mov_b32 s55, 0")
    a("s_mov_b32 s3, s62")
    a.label("C_FB1")
    a(f"buffer_load_dwordx4 {vr(KF,4)}, v1, {WS}, s3 offen sc1")
    a(f"buffer_load_dwordx4 {vr(KF+4,4)}, v1, {WS}, s3 offen offset:1024 sc1")
    a("s_waitcnt vmcnt(0)")
    mfma(a, SB, KF, Q0, 0)
    mfma(a, SB, KF + 4, Q1)
    a("s_nop 15")
    a("s_nop 3")
    max16(a, T1, SB, extra=[T0])
    a(f"v_mov_b32 v{T0}, v{T1}")
    a("s_add_u32 s3, s3, 4096")
    a("s_add_u32 s55, s55, 1")
    a("s_cmp_lt_u32 s55, 64")
    a("s_cbranch_scc1 C_FB1")
    xhalf_max(a, T0, T1)
    for r in range(16):
        a(f"v_sub_f32 v{CM+r}, 0, v{T0}")
    for r in range(16):
        a(f"v_mov_b32 v{O+r}, 0")
    a("s_mov_b32 s55, 0")
    a("s_mov_b32 s3, s62")
    a.label("C_FB2")
    a(f"buffer_load_dwordx4 {vr(KF,4)}, v1, {WS}, s3 offen sc1")
    a(f"buffer_load_dwordx4 {vr(KF+4,4)}, v1, {WS}, s3 offen offset:1024 sc1")
    a(f"buffer_load_dwordx4 {vr(VF,4)}, v1, {WS}, s3 offen offset:2048 sc1")
    a(f"buffer_load_dwordx4 {vr(VF+4,4)}, v1, {WS}, s3 offen offset:3072 sc1")
    a("s_waitcnt vmcnt(0)")
    mfma(a, SB, KF, Q0, CM)
    mfma(a, SB, KF + 4, Q1)
    a("s_nop 15")
    a("s_nop 3")
    for r in range(16):
        a(f"v_exp_f32 v{SB+r}, v{SB+r}")
    a("s_nop 0")
    for q in range(8):
        a(f"v_cvt_pk_bf16_f32 v{PA_+q}, v{SB+2*q}, v{SB+2*q+1}")
    a("s_nop 1")
    mfma(a, O, VF, PA_)
    mfma(a, O, VF + 4, PA_ + 4)
    a("s_add_u32 s3, s3, 4096")
    a("s_add_u32 s55, s55, 1")
    a("s_cmp_lt_u32 s55, 64")
    a("s_cbranch_scc1 C_FB2")
    a("s_nop 15")
    a("s_nop 3")
    a(f"v_mov_b32 v{T0}, v{O+12}")
    a(f"v_mov_b32 v{T1}, v{O+12}")
    a("s_nop 1")
    a(f"v_permlane32_swap_b32 v{T0}, v{T1}")
    a(f"s_cmp_eq_u32 s{G}, 0")
    a("s_cbranch_scc1 C_FB3")
    for r in range(8):
        a(f"v_mov_b32 v{O+r}, v{O+8+r}")
    a.label("C_FB3")
    for r in range(8):
        a(f"v_mov_b32 v{SA+r}, v{O+r}")
    a("s_branch C_STORE")


def gen_helper(a):
    E, CC, XS, WSO, LX, LW, SL, N = 48, 49, 50, 51, 52, 53, 54, 55
    VFULL, VCNT, TMP = 163, 162, 144
    a.label("L_HELPER")
    a("s_setprio 3")
    a(f"s_sub_u32 s{E}, s{W_}, 8")
    srd(a, 28, 10, X_BYTES)
    srd(a, 32, 12, W_BYTES)
    a("v_lshrrev_b32 v2, 3, v0")
    a("v_and_b32 v3, 7, v0")
    a("v_lshrrev_b32 v12, 4, v0")
    for i in range(4):
        a(f"v_add_u32 v13, {4*i}, v12")
        a("v_and_b32 v13, 7, v13")
        a("v_xor_b32 v13, v13, v3")
        a(f"v_add_u32 v14, {8*i}, v2")
        a("v_mul_u32_u24 v15, 896, v14")
        a(f"v_lshl_add_u32 v{4+i}, v13, 4, v15")
        a(f"v_add_u32 v{8+i}, v{4+i}, v15")
    a("s_mov_b32 s3, 5462")
    for i in range(3):
        a(f"v_add_u32 v15, {64*i}, v0")
        a("v_mul_lo_u32 v16, v15, s3")
        a("v_lshrrev_b32 v16, 16, v16")
        a("v_mul_u32_u24 v17, 12, v16")
        a("v_sub_u32 v15, v15, v17")
        a("v_mul_u32_u24 v16, 2688, v16")
        a(f"v_lshl_add_u32 v{12+i}, v15, 4, v16")
    a(f"s_lshl_b32 s{XS}, s{M_}, 2")
    a(f"s_add_u32 s{XS}, s{XS}, s{E}")
    a(f"s_mul_i32 s{XS}, s{XS}, {32*896}")
    a(f"s_mul_i32 s{WSO}, s{TR}, 168")
    a(f"s_andn2_b32 s{WSO}, s{WSO}, 15")
    a(f"s_mul_i32 s3, s{E}, {16*2688}")
    a(f"s_add_u32 s{WSO}, s{WSO}, s3")
    a(f"s_lshl_b32 s{LX}, s{E}, 12")
    a(f"s_mul_i32 s{LW}, s{E}, 3072")
    a(f"s_add_u32 s{LW}, s{LW}, 16384")
    a(f"s_lshl_b32 s{CC}, s{TR}, 1")
    a(f"s_add_u32 s{CC}, s{CC}, s{M_}")
    a(f"s_mul_i32 s3, s{CC}, 37")
    a("s_lshr_b32 s3, s3, 8")
    a("s_mul_i32 s3, s3, 7")
    a(f"s_sub_u32 s{CC}, s{CC}, s3")
    a(f"s_mov_b32 s{SL}, 0")

    def gemm_issue():
        a(f"s_lshl_b32 s56, s{CC}, 7")
        a(f"s_add_u32 s56, s56, s{XS}")
        a(f"s_mul_i32 s57, s{CC}, {64*2688}")
        a(f"s_add_u32 s57, s57, s{WSO}")
        a(f"s_add_u32 s58, s{SL}, s{LX}")
        a(f"s_add_u32 s59, s{SL}, s{LW}")
        for i in range(4):
            a(f"s_add_u32 m0, s58, {i*1024}")
            a("s_nop 0")
            a(f"buffer_load_dwordx4 v{4+i}, s[28:31], s56 offen lds")
        for i in range(3):
            a(f"s_add_u32 m0, s59, {i*1024}")
            a("s_nop 0")
            a(f"buffer_load_dwordx4 v{12+i}, s[32:35], s57 offen lds")
        a(f"s_add_u32 s{CC}, s{CC}, 1")
        a(f"s_cmp_eq_u32 s{CC}, 7")
        a(f"s_cselect_b32 s{CC}, 0, s{CC}")
        a(f"s_add_u32 s{SL}, s{SL}, {SLOT}")
        a(f"s_and_b32 s{SL}, s{SL}, {4*SLOT-1:#x}")

    def publish(val):
        a(f"v_mov_b32 v{VCNT}, {val}")
        a(f"ds_write_b32 v{VFULL}, v{VCNT}")

    def flag_addr(dst, shead, base):
        a(f"v_lshrrev_b32 v{dst}, 4, v0")
        a(f"v_lshlrev_b32 v{dst}, 4, v{dst}")
        a(f"v_add_u32 v{dst}, s{shead}, v{dst}")
        a(f"v_mul_u32_u24 v{dst}, 171, v{dst}")
        a(f"v_lshrrev_b32 v{dst}, 9, v{dst}")
        a(f"v_min_u32 v{dst}, 15, v{dst}")
        a(f"v_lshlrev_b32 v{dst}, 7, v{dst}")
        a("v_and_b32 v19, 15, v0")
        a(f"v_lshl_add_u32 v{dst}, v19, 2, v{dst}")
        a(f"v_add_u32 v{dst}, {base:#x}, v{dst}")

    gemm_issue()
    gemm_issue()
    stamp(a, 2)
    flag_addr(18, H_, FB_OFF)
    a("s_waitcnt vmcnt(7)")
    a("s_barrier")
    gemm_issue()
    gemm_issue()
    tag_finish(a)
    a(f"s_lshl_b32 s60, s{TR}, 7")
    a(f"s_lshl_b32 s3, s{M_}, 2")
    a("s_add_u32 s60, s60, s3")
    a(f"s_add_u32 s61, s60, {FB_OFF:#x}")
    def shared_gpoll(k, vaddr, mlo, mhi, sleep=2):
        L = a.new("SG")
        a(f"s_cmp_lg_u32 s{E}, 0")
        a(f"s_cbranch_scc1 {L}")
        gpoll(a, vaddr, mlo, mhi, 19)
        a(f"v_mov_b32 v{VCNT}, 1")
        a(f"ds_write_b32 v{VSY}, v{VCNT} offset:{96+4*k}")
        a(f"s_branch {L}_J")
        a.label(L)
        lpoll(a, 96 + 4 * k, 1, 1, TMP, sleep=sleep)
        a.label(L + "_J")

    a(f"s_mov_b32 s{N}, 4")
    a.label("H_GL")
    a("s_waitcnt vmcnt(14)")
    a("s_barrier")
    a(f"s_cmp_lg_u32 s{N}, 7")
    a("s_cbranch_scc1 H_NOSW")
    srd(a, 28, 4, X_BYTES)
    srd(a, 32, 6, W_BYTES)
    for i in range(4):
        a(f"v_mov_b32 v{4+i}, v{8+i}")
    a(f"s_lshl_b32 s{XS}, s{M_}, 7")
    a(f"s_lshr_b32 s3, s{E}, 1")
    a("s_lshl_b32 s3, s3, 6")
    a(f"s_add_u32 s{XS}, s{XS}, s3")
    a(f"s_and_b32 s3, s{E}, 1")
    a(f"s_add_u32 s{XS}, s{XS}, s3")
    a(f"s_mul_i32 s{XS}, s{XS}, 896")
    a.label("H_NOSW")
    a(f"s_cmp_lg_u32 s{N}, 12")
    a("s_cbranch_scc1 H_NOFB")
    a(f"s_cmp_lg_u32 s{E}, 0")
    a("s_cbranch_scc1 H_NOFB")
    flag_store(a, 61)
    a.label("H_NOFB")
    gemm_issue()
    a(f"s_add_u32 s{N}, s{N}, 1")
    a(f"s_cmp_lt_u32 s{N}, 14")
    a("s_cbranch_scc1 H_GL")
    a("s_waitcnt vmcnt(14)")
    a("s_barrier")
    a("s_waitcnt vmcnt(7)")
    a("s_barrier")
    a("s_waitcnt vmcnt(0)")
    a("s_barrier")
    stamp(a, 4)
    shared_gpoll(0, 18, 0xffffffff, 0xffff, sleep=1)
    stamp(a, 5)
    KVS = 50
    a(f"s_lshl_b32 s{KVS}, s{H_}, 18")
    a(f"s_add_u32 s{KVS}, s{KVS}, {KVB:#x}")
    a(f"s_lshl_b32 s{LX}, s{E}, 13")
    a(f"s_add_u32 s{KVS}, s{KVS}, s{LX}")

    def kv_issue(c):
        slot = (14 + c) % 4
        a(f"s_add_u32 s56, s{QBK}, {c}")
        a("s_and_b32 s56, s56, 7")
        a("s_lshl_b32 s56, s56, 15")
        a(f"s_add_u32 s56, s56, s{KVS}")
        a("s_add_u32 s57, s56, 4096")
        for half in range(2):
            a(f"s_add_u32 m0, s{LX}, {slot*SLOT + half*4096}")
            a("s_nop 0")
            for i in range(4):
                a(f"buffer_load_dwordx4 v1, {WS}, s{56+half} offen offset:{i*1024} sc1 lds")

    a(f"s_lshl_b32 s56, s{H_}, 6")
    a(f"s_lshl_b32 s3, s{QBK}, 2")
    a("s_add_u32 s56, s56, s3")
    a(f"s_add_u32 s56, s56, s{E}")
    a("s_lshl_b32 s56, s56, 11")
    a(f"s_lshl_b32 s3, s{E}, 11")
    a(f"s_add_u32 m0, s3, {MREG}")
    a("s_nop 0")
    for i in range(2):
        a(f"buffer_load_dwordx4 v1, {WS}, s56 offen offset:{i*1024} sc1 lds")
    kv_issue(0)
    HA, TA, TT_ = H_, 61, 63
    a(f"s_lshl_b32 s{TA}, s{QBK}, 2")
    a(f"s_add_u32 s{TA}, s{TA}, s{E}")
    a(f"s_and_b32 s{TT_}, s{TA}, 31")
    a(f"v_add_u32 v18, {FA_OFF-FB_OFF:#x}, v18")
    a("v_lshrrev_b32 v20, 3, v0")
    a("v_mul_u32_u24 v20, 896, v20")
    a("v_and_b32 v19, 7, v0")
    a("v_bfe_u32 v21, v0, 4, 1")
    a("v_lshlrev_b32 v21, 2, v21")
    a("v_xor_b32 v19, v19, v21")
    a("v_lshl_add_u32 v20, v19, 4, v20")
    AQ, AKC, AVC, AKP, AVP = 24, 32, 40, 48, 56
    CCR, CPR, AO, AP, APP, T0, T1 = 64, 80, 96, 112, 120, 124, 125
    a(f"s_mov_b32 s3, {NEG_BIG:#x}")
    for r in range(16):
        a(f"v_mov_b32 v{CCR+r}, s3")
    for r in range(12, 16):
        a(f"v_mov_b32 v{CPR+r}, s3")
    for r in range(12):
        a(f"v_mov_b32 v{CPR+r}, 0")
    for r in range(16):
        c = (r & 3) + 8 * (r >> 2)
        a(f"s_mov_b32 exec_lo, {(0xFF << c) & 0xFFFFFFFF:#x}")
        a(f"s_mov_b32 exec_hi, {(0xFF << (c + 4)) & 0xFFFFFFFF:#x}")
        a(f"v_mov_b32 v{CCR+r}, 0")
    a(f"s_cmp_eq_u32 s{TT_}, 0")
    a("s_cbranch_scc1 H_NOPREV")
    for r in range(12, 16):
        a(f"s_mov_b32 exec_lo, {(1 << (r & 3)) - 1:#x}")
        a(f"s_mov_b32 exec_hi, {(1 << ((r & 3) + 4)) - 1:#x}")
        a(f"v_mov_b32 v{CPR+r}, 0")
    a.label("H_NOPREV")
    a("s_mov_b64 exec, -1")
    a(f"s_lshl_b32 s60, s{TR}, 7")
    a(f"s_lshl_b32 s3, s{M_}, 2")
    a("s_add_u32 s60, s60, s3")
    a(f"s_add_u32 s60, s60, {FA_OFF:#x}")
    a("s_waitcnt vmcnt(0)")
    a("s_barrier")
    stamp(a, 6)
    kv_issue(1)
    kv_issue(2)
    a("s_waitcnt vmcnt(8)")
    a("s_barrier")
    kv_issue(3)
    a(f"s_cmp_lg_u32 s{E}, 0")
    a("s_cbranch_scc1 H_NOFA")
    flag_store(a, 60)
    a.label("H_NOFA")
    a("s_waitcnt vmcnt(8)")
    a("s_barrier")
    kv_issue(4)
    a("s_waitcnt vmcnt(8)")
    a("s_barrier")
    kv_issue(5)
    a("s_waitcnt vmcnt(8)")
    a("s_barrier")
    kv_issue(6)
    shared_gpoll(1, 18, 0xffffffff, 0xffff, sleep=2)
    a("s_waitcnt vmcnt(8)")
    a(f"s_lshl_b32 s3, s{HA}, 6")
    a(f"s_add_u32 s3, s3, s{TA}")
    a("s_lshl_b32 s57, s3, 11")
    a(f"s_add_u32 s57, s57, {QA:#x}")
    a("s_lshl_b32 s58, s3, 12")
    a(f"s_add_u32 s58, s58, {KVA:#x}")
    a("s_sub_u32 s59, s58, 4096")
    a(f"s_cmp_eq_u32 s{TT_}, 0")
    a("s_cselect_b32 s59, s58, s59")
    for (reg, so, off) in ((AQ, 57, 0), (AQ + 4, 57, 1024), (AKC, 58, 0), (AKC + 4, 58, 1024), (AKP, 59, 0),
                           (AKP + 4, 59, 1024), (AVC, 58, 2048), (AVC + 4, 58, 3072), (AVP, 59, 3072)):
        a(f"buffer_load_dwordx4 {vr(reg,4)}, v1, {WS}, s{so} offen offset:{off} sc1")
    a("s_barrier")
    kv_issue(7)
    a("s_waitcnt vmcnt(11)")
    mfma(a, CCR, AKC, AQ)
    mfma(a, CPR, AKP, AQ)
    mfma(a, CCR, AKC + 4, AQ + 4)
    mfma(a, CPR, AKP + 4, AQ + 4)
    a("s_nop 15")
    a("s_nop 3")
    max16(a, T0, CCR, extra=[CPR + 12, CPR + 13, CPR + 14, CPR + 15])
    xhalf_max(a, T0, T1)
    rs = list(range(CCR, CCR + 16)) + list(range(CPR + 12, CPR + 16))
    for r in rs:
        a(f"v_sub_f32 v{r}, v{r}, v{T0}")
    for r in rs:
        a(f"v_exp_f32 v{r}, v{r}")
    a("s_nop 0")
    for j in range(8):
        a(f"v_cvt_pk_bf16_f32 v{AP+j}, v{CCR+2*j}, v{CCR+2*j+1}")
    a(f"v_mov_b32 v{APP}, 0")
    a(f"v_mov_b32 v{APP+1}, 0")
    a(f"v_cvt_pk_bf16_f32 v{APP+2}, v{CPR+12}, v{CPR+13}")
    a(f"v_cvt_pk_bf16_f32 v{APP+3}, v{CPR+14}, v{CPR+15}")
    a("s_waitcnt vmcnt(8)")
    a("s_nop 0")
    mfma(a, AO, AVC, AP, 0)
    mfma(a, AO, AVC + 4, AP + 4)
    mfma(a, AO, AVP, APP)
    a("s_nop 15")
    a("s_nop 3")
    a(f"v_mov_b32 v{T0}, v{AO+12}")
    a(f"v_mov_b32 v{T1}, v{AO+12}")
    a("s_nop 1")
    a(f"v_permlane32_swap_b32 v{T0}, v{T1}")
    a("s_nop 1")
    a(f"v_rcp_f32 v{T1}, v{T1}")
    a("s_nop 0")
    for r in range(16):
        a(f"v_mul_f32 v{AO+r}, v{AO+r}, v{T1}")
    for j in range(8):
        a(f"v_cvt_pk_bf16_f32 v{AP+j}, v{AO+2*j}, v{AO+2*j+1}")
    a("s_mov_b32 exec_lo, 0")
    a(f"v_mov_b32 v{AP+6}, 0")
    a(f"v_mov_b32 v{AP+7}, 0")
    a("s_mov_b32 exec_lo, -1")
    a(f"s_lshl_b32 s57, s{TA}, 4")
    a(f"s_add_u32 s57, s57, s{HA}")
    a("s_lshl_b32 s57, s57, 11")
    a(f"s_add_u32 s57, s57, {OFA:#x}")
    a(f"buffer_store_dwordx4 {vr(AP,4)}, v1, {WS}, s57 offen sc1")
    a(f"buffer_store_dwordx4 {vr(AP+4,4)}, v1, {WS}, s57 offen offset:1024 sc1")
    a(f"s_lshl_b32 s3, s{TT_}, 7")
    a(f"s_lshr_b32 s58, s{TA}, 5")
    a("s_lshl_b32 s58, s58, 4")
    a(f"s_add_u32 s58, s58, s{HA}")
    a("s_lshl_b32 s58, s58, 2")
    a("s_add_u32 s58, s58, s3")
    a(f"s_add_u32 s58, s58, {FOA_OFF:#x}")
    a("s_barrier")
    a("s_waitcnt vmcnt(0)")
    flag_store(a, 58)
    a("s_cmp_ge_u32 s2, 224")
    a("s_cbranch_scc1 H_NOPROJ")
    srd(a, 28, 8, WO_BYTES)
    srd(a, 32, 14, WO_BYTES)
    WOS = 50
    a(f"s_mul_i32 s{WOS}, s{E}, {64*896}")
    a(f"s_lshl_b32 s3, s{NB}, 7")
    a(f"s_add_u32 s{WOS}, s{WOS}, s3")

    def wo_issue(sr, slot, hf):
        for i in range(8):
            a(f"s_add_u32 s56, s{WOS}, {(hf*256 + i*8)*896}")
            a(f"s_add_u32 m0, s{LX}, {slot*SLOT + i*1024}")
            a("s_nop 0")
            a(f"buffer_load_dwordx4 v20, {sr}, s56 offen lds")

    a(f"s_lshl_b32 s3, s{MB}, 7")
    a(f"s_add_u32 s3, s3, {FOA_OFF:#x}")
    a("v_lshlrev_b32 v18, 2, v0")
    a("v_add_u32 v18, s3, v18")
    wo_issue("s[28:31]", 2, 0)
    a("s_barrier")
    wo_issue("s[28:31]", 3, 1)
    stamp(a, 7)
    shared_gpoll(2, 18, 0xffffffff, 0, sleep=2)
    stamp(a, 8)
    a("s_waitcnt vmcnt(0)")
    a("s_barrier")
    wo_issue("s[32:35]", 0, 0)
    a("s_barrier")
    wo_issue("s[32:35]", 1, 1)
    a("s_waitcnt vmcnt(0)")
    a("s_branch H_DONE")
    a.label("H_NOPROJ")
    a("s_barrier")
    a("s_barrier")
    a("s_barrier")
    a.label("H_DONE")
    stamp(a, 13)
    stamp(a, 14, True)
    stamp_flush(a, 15)
    a("s_endpgm")


HEADER = """; Kernarg layout for this problem (72 bytes, ptrs only, base s[0:1]):
"""


def main():
    out = sys.argv[1] if len(sys.argv) > 1 else f"cdna_kernels/{NAME}.s"
    a = Asm()
    a.raw(HEADER.rstrip())
    a.raw(f"; @launch grid=(256,1,1) block=(768,1,1) lds={LDS_BYTES}")
    a.raw('.amdgcn_target "amdgcn-amd-amdhsa--gfx950"')
    gen(a)
    open(out, "w").write(a.text())


if __name__ == "__main__":
    main()
```

```python
import math, struct, sys

NAME = "concat_heads__sliding_local_dilated__softmax_full_mha__prompt"
OPT = dict(cpf=0, stamp=0, dbg=0, sync="async", pre=0, map48=0, outsc=0, fbn=8, lst=0)
for x in sys.argv[2:]:
    k, v = x.split("=")
    OPT[k] = int(v) if v.lstrip("-").isdigit() else v
STAMP = OPT["stamp"] or OPT["dbg"]
ASYNC = OPT["sync"] == "async"


def f32bits(x):
    return struct.unpack("<I", struct.pack("<f", x))[0]


CSCALE = (28 ** -0.5) * math.log2(math.e)
QB, KVB, QA, KVA, OFA, OFB = 0x000000, 0x200000, 0x600000, 0x800000, 0xC00000, 0xE00000
FL = 0x1000000
FB_OFF, FA_OFF, FOA_OFF, FOB_OFF = FL + 0x1000, FL + 0x2000, FL + 0x3000, FL + 0x5000
STAMP_OFF = 0x1100000
WS_BYTES = 0x1010000
X_BYTES = 2048 * 448 * 2
W_BYTES = 448 * 1344 * 2
WO_BYTES = 448 * 448 * 2
OUT_BYTES = 2048 * 896 * 2
NEG_BIG = f32bits(-3.0e38)
M_OFF = 64.0
SLOT = 32768
GS = 28672
NGS = 5
MREG = 4 * SLOT
QLDS = NGS * GS
LDS_BYTES = MREG + 32768
SY = MREG + 0x7F00
POLL_MAX = 1 << 18
LPOLL_MAX = 1 << 22


class Asm:
    def __init__(self):
        self.lines = []
        self.uid = 0

    def __call__(self, s):
        self.lines.append("    " + s)

    def label(self, l):
        self.lines.append(l + ":")

    def raw(self, s):
        self.lines.append(s)

    def new(self, p):
        self.uid += 1
        return f"{p}_{self.uid}"

    def text(self):
        return "\n".join(self.lines) + "\n"


def vr(a, n):
    return f"v[{a}:{a+n-1}]"


def srd(a, d, ptr, nbytes):
    a(f"s_mov_b32 s{d}, s{ptr}")
    a(f"s_and_b32 s{d+1}, s{ptr+1}, 0xffff")
    a(f"s_mov_b32 s{d+2}, {nbytes:#x}")
    a(f"s_mov_b32 s{d+3}, 0x20000")


def mfma(a, d, A, B, C=None):
    c = "0" if C == 0 else vr(d if C is None else C, 16)
    a(f"v_mfma_f32_32x32x16_bf16 {vr(d,16)}, {vr(A,4)}, {vr(B,4)}, {c}")


def stamp(a, i, real=False):
    if not STAMP:
        return
    a(f"{'s_memrealtime' if real else 's_memtime'} s[{64+2*i}:{65+2*i}]")
    a("s_waitcnt lgkmcnt(0)")


def lstamp(a, sidx):
    if not OPT["lst"]:
        return
    a("s_memtime s[94:95]")
    a(f"s_mov_b32 m0, {sidx}")
    a("s_waitcnt lgkmcnt(0)")
    a("v_writelane_b32 v167, s94, m0")


def stamp_flush(a, n):
    if not STAMP:
        return
    a("s_waitcnt lgkmcnt(0)")
    if OPT["dbg"]:
        L = a.new("SF")
        a("s_cmp_lg_u32 s2, 37")
        a(f"s_cbranch_scc1 {L}")
        a(f"s_cmp_lg_u32 s{W_}, 0")
        a(f"s_cbranch_scc1 {L}")
        a("v_mov_b32 v0, 0")
        for i in range(n):
            base = 66 if i in (1, 14) else 64
            a(f"s_sub_u32 s60, s{64+2*i}, s{base}")
            a("v_mov_b32 v2, s60")
            a(f"global_store_dword v0, v2, s[18:19] offset:{4*i}")
            a("s_nop 1")
        a.label(L)
        return
    a("s_mul_i32 s60, s2, 12")
    a(f"s_add_u32 s60, s60, s{W_}")
    a("s_lshl_b32 s60, s60, 7")
    a(f"s_add_u32 s60, s60, {STAMP_OFF:#x}")
    a("v_mov_b32 v0, s60")
    for i in range(n):
        a(f"v_mov_b32 v2, s{64+2*i}")
        a(f"global_store_dword v0, v2, s[20:21] offset:{4*i}")
        a("s_nop 1")
    if OPT["lst"]:
        for i in range(16):
            a(f"v_readlane_b32 s61, v167, {i}")
            a("s_nop 3")
            a("v_mov_b32 v2, s61")
            a(f"global_store_dword v0, v2, s[20:21] offset:{64+4*i}")
            a("s_nop 1")


def max16(a, dst, S, extra=()):
    regs = [S + r for r in range(16)] + list(extra)
    a(f"v_max3_f32 v{dst}, v{regs[0]}, v{regs[1]}, v{regs[2]}")
    k = 3
    while k + 1 < len(regs):
        a(f"v_max3_f32 v{dst}, v{dst}, v{regs[k]}, v{regs[k+1]}")
        k += 2
    if k < len(regs):
        a(f"v_max_f32 v{dst}, v{dst}, v{regs[k]}")


def xhalf_max(a, m, t):
    a(f"v_mov_b32 v{t}, v{m}")
    a("s_nop 1")
    a(f"v_permlane32_swap_b32 v{m}, v{t}")
    a("s_nop 1")
    a(f"v_max_f32 v{m}, v{m}, v{t}")


WS = "s[24:27]"
W_, M_, TR, H_, QBK, MB, NB, TAG = 40, 41, 42, 43, 44, 45, 46, 47
VSY, VTAG, VZ = 164, 165, 166


def gpoll(a, vaddr, mlo, mhi, vtmp, sleep=4):
    L = a.new("GP")
    a(f"s_mov_b32 exec_lo, {mlo:#x}")
    a(f"s_mov_b32 exec_hi, {mhi:#x}")
    a(f"s_mov_b32 s62, {POLL_MAX}")
    a.label(L)
    a(f"buffer_load_dword v{vtmp}, v{vaddr}, {WS}, 0 offen sc1")
    a("s_waitcnt vmcnt(0)")
    a(f"v_cmp_ne_u32 vcc, s{TAG}, v{vtmp}")
    a("s_sub_u32 s62, s62, 1")
    a("s_nop 3")
    a(f"s_cbranch_vccz {L}_OK")
    a(f"s_sleep {sleep}")
    a("s_cmp_lg_u32 s62, 0")
    a(f"s_cbranch_scc1 {L}")
    a.label(L + "_OK")
    a("s_mov_b64 exec, -1")


def lpoll(a, off, nwords, thr, t, sleep=1):
    L = a.new("LP")
    a(f"s_mov_b32 s62, {LPOLL_MAX}")
    a.label(L)
    if nwords == 1:
        a(f"ds_read_b32 v{t}, v{VSY} offset:{off}")
        a("s_waitcnt lgkmcnt(0)")
    else:
        a(f"ds_read_b128 {vr(t,4)}, v{VSY} offset:{off}")
        if nwords == 8:
            a(f"ds_read_b128 {vr(t+4,4)}, v{VSY} offset:{off+16}")
        a("s_waitcnt lgkmcnt(0)")
        a(f"v_min3_u32 v{t}, v{t}, v{t+1}, v{t+2}")
        if nwords == 8:
            a(f"v_min3_u32 v{t}, v{t}, v{t+3}, v{t+4}")
            a(f"v_min3_u32 v{t}, v{t}, v{t+5}, v{t+6}")
            a(f"v_min_u32 v{t}, v{t}, v{t+7}")
        else:
            a(f"v_min_u32 v{t}, v{t}, v{t+3}")
    a(f"v_cmp_gt_u32 vcc, {thr}, v{t}")
    a("s_sub_u32 s62, s62, 1")
    a("s_nop 3")
    a(f"s_cbranch_vccz {L}_OK")
    if sleep:
        a(f"s_sleep {sleep}")
    a("s_cmp_lg_u32 s62, 0")
    a(f"s_cbranch_scc1 {L}")
    a.label(L + "_OK")


def flag_store(a, soff):
    a("s_mov_b64 exec, 1")
    a(f"buffer_store_dword v{VTAG}, v{VZ}, {WS}, s{soff} offen sc1")
    a("s_mov_b64 exec, -1")


def tag_finish(a):
    a("s_waitcnt lgkmcnt(0)")
    a(f"s_mul_i32 s{TAG}, s{TAG}, 0x9e3779b1")
    a(f"s_add_u32 s{TAG}, s{TAG}, 0x7f4a7c15")
    a(f"v_mov_b32 v{VTAG}, s{TAG}")


def gen(a):
    kname = NAME + "_kernel"
    a.raw(".text")
    a.raw(f".globl {kname}")
    a.raw(".p2align 8")
    a.raw(f".type {kname},@function")
    a.label(kname)
    a("s_cmp_ge_u32 s2, 256")
    a("s_cbranch_scc1 L_END")
    a("s_load_dwordx16 s[4:19], s[0:1], 0")
    a("s_load_dwordx2 s[20:21], s[0:1], 64")
    a("v_lshrrev_b32 v1, 6, v0")
    a("v_and_b32 v0, 63, v0")
    a(f"v_readfirstlane_b32 s{W_}, v1")
    a("v_lshlrev_b32 v1, 4, v0")
    if OPT["map48"]:
        a(f"s_and_b32 s{M_}, s2, 3")
        a(f"s_lshl_b32 s{M_}, s{M_}, 2")
        a("s_bfe_u32 s3, s2, 0x20003")
        a(f"s_add_u32 s{M_}, s{M_}, s3")
        a(f"s_bfe_u32 s{TR}, s2, 0x10002")
        a(f"s_lshl_b32 s{TR}, s{TR}, 3")
        a("s_lshr_b32 s3, s2, 5")
        a(f"s_add_u32 s{TR}, s{TR}, s3")
    else:
        a(f"s_and_b32 s{M_}, s2, 1")
        a(f"s_lshl_b32 s{M_}, s{M_}, 3")
        a("s_bfe_u32 s3, s2, 0x30003")
        a(f"s_add_u32 s{M_}, s{M_}, s3")
        a(f"s_bfe_u32 s{TR}, s2, 0x20001")
        a(f"s_lshl_b32 s{TR}, s{TR}, 2")
        a("s_lshr_b32 s3, s2, 6")
        a(f"s_add_u32 s{TR}, s{TR}, s3")
    a(f"s_cmp_lt_u32 s{W_}, 8")
    a("s_cbranch_scc1 L_COMPUTE")
    gen_helper(a)
    gen_compute(a)
    a.label("L_END")
    a("s_endpgm")
    a.raw('.section .rodata,"a"')
    a.raw(".p2align 6")
    a.raw(f".amdhsa_kernel {kname}")
    a.raw("  .amdhsa_next_free_vgpr 168")
    a.raw("  .amdhsa_next_free_sgpr 100")
    a.raw("  .amdhsa_accum_offset 168")
    a.raw("  .amdhsa_group_segment_fixed_size 0")
    a.raw("  .amdhsa_kernarg_size 72")
    a.raw("  .amdhsa_user_sgpr_count 2")
    a.raw("  .amdhsa_user_sgpr_kernarg_segment_ptr 1")
    a.raw("  .amdhsa_system_sgpr_workgroup_id_x 1")
    a.raw(".end_amdhsa_kernel")


def common_late(a):
    a(f"s_and_b32 s{H_}, s2, 15")
    a(f"s_lshr_b32 s{QBK}, s2, 4")
    a(f"s_and_b32 s{MB}, s2, 7")
    a(f"s_lshl_b32 s{MB}, s{MB}, 2")
    a("s_bfe_u32 s3, s2, 0x20003")
    a(f"s_add_u32 s{MB}, s{MB}, s3")
    a(f"s_lshr_b32 s{NB}, s2, 5")
    a(f"v_mov_b32 v{VSY}, {SY:#x}")
    a(f"v_mov_b32 v{VZ}, 0")
    a(f"s_add_u32 s22, s20, {FL:#x}")
    a("s_addc_u32 s23, s21, 0")
    a(f"s_load_dword s{TAG}, s[22:23], 0")
    srd(a, 24, 20, WS_BYTES)


def gen_compute(a):
    U, G, N, TT, QBASE, KVBASE = 48, 49, 50, 51, 52, 53
    SLB = 61
    VFREE, VCNT = 163, 162
    a.label("L_COMPUTE")
    a(f"s_and_b32 s{U}, s{W_}, 3")
    a(f"s_lshr_b32 s{G}, s{W_}, 2")
    a(f"s_cmp_lg_u32 s{W_}, 0")
    a("s_cbranch_scc1 C_NOZ")
    a("v_lshlrev_b32 v2, 2, v0")
    a(f"v_add_u32 v2, {SY:#x}, v2")
    a("v_mov_b32 v3, 0")
    a("ds_write_b32 v2, v3")
    a.label("C_NOZ")
    if OPT["cpf"]:
        a(f"s_sub_u32 s3, s{W_}, 1")
        a("s_cmp_gt_u32 s3, 1")
        a("s_cbranch_scc1 C_NOCPF")
        a("s_getpc_b64 s[56:57]")
        a.label("C_PCREF")
        a("s_lshl_b32 s3, s3, 13")
        a("v_lshlrev_b32 v2, 7, v0")
        a("v_add_u32 v2, s3, v2")
        a(f"v_min_u32 v2, L_END-{NAME}_kernel, v2")
        a(f"s_sub_u32 s56, s56, C_PCREF-{NAME}_kernel")
        a("s_subb_u32 s57, s57, 0")
        a("v_mov_b32 v3, s57")
        a("v_add_co_u32 v2, vcc, s56, v2")
        a("s_nop 1")
        a("v_addc_co_u32 v3, vcc, 0, v3, vcc")
        a("global_load_dword v160, v[2:3], off")
        a.label("C_NOCPF")
    a("s_waitcnt lgkmcnt(0)")
    if ASYNC:
        a("s_barrier")
    stamp(a, 0)
    stamp(a, 1, True)
    common_late(a)
    a(f"s_lshl_b32 s3, s{W_}, 2")
    a(f"s_add_u32 s3, s3, {SY+16:#x}")
    a(f"v_mov_b32 v{VFREE}, s3")
    a(f"v_mov_b32 v{VCNT}, 0")
    a("v_and_b32 v16, 31, v0")
    a(f"s_lshl_b32 s3, s{U}, 5")
    a("v_add_u32 v16, s3, v16")
    a("v_bfe_u32 v17, v16, 1, 3")
    a("v_lshrrev_b32 v18, 5, v0")
    a("v_lshlrev_b32 v16, 7, v16")
    for ks in range(4):
        a(f"v_or_b32 v19, {2*ks}, v18")
        a("v_xor_b32 v19, v19, v17")
        a(f"v_lshl_add_u32 v{2+ks}, v19, 4, v16")
    a("v_bfe_u32 v19, v0, 2, 2")
    a("v_lshl_add_u32 v19, v18, 3, v19")
    a("v_mul_u32_u24 v19, 192, v19")
    a("v_bfe_u32 v20, v0, 4, 1")
    a("v_lshl_add_u32 v19, v20, 5, v19")
    a("v_and_b32 v20, 3, v0")
    a("v_lshl_add_u32 v19, v20, 3, v19")
    a(f"s_and_b32 s3, s{TR}, 1")
    a("s_lshl_b32 s3, s3, 3")
    a(f"s_mul_i32 s54, s{G}, 112")
    a("s_add_u32 s3, s3, s54")
    a("s_add_u32 s3, s3, 16384")
    a("v_add_u32 v6, s3, v19")
    a(f"s_mov_b32 s{SLB}, {2*GS}")
    a(f"s_mul_i32 s54, s{TR}, 3")
    a(f"s_lshl_b32 s3, s{G}, 1")
    a("s_add_u32 s54, s54, s3")
    a(f"s_lshl_b32 s{TT}, s{M_}, 2")
    a(f"s_add_u32 s{TT}, s{TT}, s{U}")
    a(f"s_mov_b32 s{QBASE}, {QB:#x}")
    a(f"s_mov_b32 s{KVBASE}, {KVB:#x}")
    a(f"s_mov_b32 s{N}, 0")
    a(f"s_lshl_b32 s63, s{TR}, 7")
    a(f"s_lshl_b32 s3, s{M_}, 2")
    a("s_add_u32 s63, s63, s3")
    XF, WF, ACC, PK, TMP = [24, 72], [40, 88], [120, 136], 152, 16

    def addr():
        for r in range(5):
            a(f"v_add_u32 v{8+r}, s{SLB}, v{2+r}")
        a(f"s_add_u32 s{SLB}, s{SLB}, {GS}")
        a(f"s_cmp_eq_u32 s{SLB}, {NGS*GS}")
        a(f"s_cselect_b32 s{SLB}, 0, s{SLB}")
        a(f"v_add_u32 v{VCNT}, 1, v{VCNT}")

    def reads(buf, ns):
        for ks in range(4):
            a(f"ds_read_b128 {vr(XF[buf]+4*ks,4)}, v{8+ks}")
            for i in range(ns):
                for t in range(2):
                    off = (16 * ks + 4 * t) * 192 + i * 56
                    a(f"ds_read_b64_tr_b16 {vr(WF[buf]+8*ks+4*i+2*t,2)}, v12 offset:{off}")

    def mfmas(types, buf):
        for ks in range(4):
            for i, ty in enumerate(types):
                if ty == 'T':
                    mfma(a, ACC[i], WF[buf] + 8 * ks + 4 * i, XF[buf] + 4 * ks)
                else:
                    mfma(a, ACC[i], XF[buf] + 4 * ks, WF[buf] + 8 * ks + 4 * i)

    def done_signal(doff, foff):
        L = a.new("DS")
        a("s_waitcnt vmcnt(0)")
        a(f"v_mov_b32 v{TMP}, 1")
        a("s_mov_b64 exec, 1")
        a(f"ds_add_rtn_u32 v{TMP+1}, v{VSY}, v{TMP} offset:{doff}")
        a("s_waitcnt lgkmcnt(0)")
        a(f"v_readfirstlane_b32 s3, v{TMP+1}")
        a("s_mov_b64 exec, -1")
        a("s_nop 3")
        a("s_cmp_lg_u32 s3, 7")
        a(f"s_cbranch_scc1 {L}")
        a(f"s_add_u32 s3, s63, {foff:#x}")
        flag_store(a, 3)
        a.label(L)

    for r in range(32):
        a(f"v_mov_b32 v{ACC[0]+r}, 0")
    for r in range(16):
        a(f"v_mov_b32 v{XF[1]+r}, 0")
    for r in range(32):
        a(f"v_mov_b32 v{WF[1]+r}, 0")
    addr()
    tag_finish(a)
    stamp(a, 2)
    if ASYNC:
        lpoll(a, 0, 4, 1, TMP, sleep=1)
    a(f"s_cmp_eq_u32 s{G}, 0")
    a("s_cbranch_scc0 C_SEL1")
    a(f"s_cmp_le_u32 s{TR}, 10")
    a("s_cbranch_scc1 C_G_TT_LOOP")
    a("s_branch C_G_NN_LOOP")
    a.label("C_SEL1")
    a(f"s_cmp_le_u32 s{TR}, 9")
    a("s_cbranch_scc1 C_G_T_LOOP")
    a("s_branch C_G_N_LOOP")

    for types in ("TT", "NN", "T", "N"):
        ns = len(types)
        L = f"C_G_{types}"

        def half(buf, k):
            if not ASYNC:
                a("s_barrier")
            reads(buf, ns)
            mfmas(types, 1 - buf)
            if ASYNC:
                a(f"ds_read_b128 {vr(TMP,4)}, v{VSY}")
                a(f"s_add_u32 s55, s{N}, {k}")
                a("s_min_u32 s55, s55, 14")
                a("s_waitcnt lgkmcnt(0)")
                a(f"ds_write_b32 v{VFREE}, v{VCNT}")
                if OPT["lst"]:
                    a(f"s_add_u32 s96, s{N}, {k-2}")
                    lstamp(a, "s96")
                a(f"v_min3_u32 v{TMP}, v{TMP}, v{TMP+1}, v{TMP+2}")
                a(f"v_min_u32 v{TMP}, v{TMP}, v{TMP+3}")
                a(f"v_cmp_gt_u32 vcc, s55, v{TMP}")
                addr()
                LL = a.new("CH")
                a(f"s_cbranch_vccz {LL}")
                lpoll(a, 0, 4, "s55", TMP, sleep=0)
                a.label(LL)
            else:
                addr()

        a.label(L + "_LOOP")
        half(0, 2)
        a(f"s_cmp_lg_u32 s{N}, {OPT['fbn']}")
        a(f"s_cbranch_scc1 {L}_NOW")
        if ASYNC:
            done_signal(48, FB_OFF)
        else:
            a("s_waitcnt vmcnt(0)")
        a.label(L + "_NOW")
        if not ASYNC:
            a("s_waitcnt lgkmcnt(0)")
        half(1, 3)
        a(f"s_cmp_eq_u32 s{N}, 6")
        a(f"s_cbranch_scc1 {L}_EPI")
        a.label(L + "_BACK")
        if not ASYNC:
            a("s_waitcnt lgkmcnt(0)")
        a(f"s_add_u32 s{N}, s{N}, 2")
        a(f"s_cmp_lt_u32 s{N}, 14")
        a(f"s_cbranch_scc1 {L}_LOOP")
        mfmas(types, 1)
        a.label(L + "_EPI")
        a("s_nop 15")
        for i, ty in enumerate(types):
            A = ACC[i]
            a(f"s_add_u32 s56, s54, {i}")
            a("s_lshr_b32 s57, s56, 4")
            a("s_and_b32 s56, s56, 15")
            a("s_lshl_b32 s56, s56, 6")
            a(f"s_add_u32 s56, s56, s{TT}")
            if ty == 'T':
                a("s_lshl_b32 s58, s56, 11")
                a(f"s_add_u32 s58, s58, s{QBASE}")
                a("s_lshl_b32 s59, s56, 12")
                a(f"s_add_u32 s59, s59, s{KVBASE}")
                a(f"s_mov_b32 s60, {f32bits(CSCALE):#x}")
                a("s_cmp_eq_u32 s57, 0")
                a("s_cselect_b32 s58, s58, s59")
                a("s_cselect_b32 s60, s60, 1.0")
                for r in range(16):
                    a(f"v_mul_f32 v{A+r}, s60, v{A+r}")
                for j in range(8):
                    a(f"v_cvt_pk_bf16_f32 v{PK+j}, v{A+2*j}, v{A+2*j+1}")
                a("s_mov_b32 exec_lo, 0")
                a(f"v_mov_b32 v{PK+6}, 0")
                a(f"v_mov_b32 v{PK+7}, 0")
                a("s_mov_b32 exec_lo, -1")
            else:
                a("s_lshl_b32 s58, s56, 12")
                a(f"s_add_u32 s58, s58, s{KVBASE}")
                a("s_add_u32 s58, s58, 2048")
                for j in range(8):
                    a(f"v_cvt_pk_bf16_f32 v{PK+j}, v{A+2*j}, v{A+2*j+1}")
                a("s_mov_b32 exec_lo, 0xe0000000")
                a("s_mov_b32 exec_hi, 0xe0000000")
                for j in range(8):
                    a(f"v_mov_b32 v{PK+j}, 0")
                a("s_mov_b32 exec_lo, 0x10000000")
                a("s_mov_b32 exec_hi, 0x10000000")
                for j in range(8):
                    a(f"v_mov_b32 v{PK+j}, 0x3f803f80")
                a("s_mov_b64 exec, -1")
            a(f"buffer_store_dwordx4 {vr(PK,4)}, v1, {WS}, s58 offen sc1")
            a(f"buffer_store_dwordx4 {vr(PK+4,4)}, v1, {WS}, s58 offen offset:1024 sc1")
            a("s_nop 1")
        a(f"s_cmp_eq_u32 s{N}, 14")
        a("s_cbranch_scc1 C_ATT")
        stamp(a, 4)
        for i in range(ns):
            for r in range(16):
                a(f"v_mov_b32 v{ACC[i]+r}, 0")
        a(f"s_and_b32 s3, s{U}, 1")
        a("s_lshl_b32 s3, s3, 5")
        a(f"s_lshl_b32 s{TT}, s{M_}, 1")
        a(f"s_add_u32 s{TT}, s{TT}, s3")
        a(f"s_lshr_b32 s3, s{U}, 1")
        a(f"s_add_u32 s{TT}, s{TT}, s3")
        a(f"s_mov_b32 s{QBASE}, {QA:#x}")
        a(f"s_mov_b32 s{KVBASE}, {KVA:#x}")
        a(f"s_branch {L}_BACK")

    Q0, Q1, KF, VF, PA_, PB_, T0, T1 = 4, 8, 12, 20, 28, 36, 44, 45
    O, CM, SA, SB = 48, 64, 80, 96
    OFR, FU = 112, 144
    VCUR, VNXT = 2, 3
    VX1, VX2 = 152, 153
    VW0, VW1, VOA, VOB, VEX, VFOB = 156, 157, 158, 159, 160, 161
    QT, PT, KQ = 51, 52, 53
    a.label("C_ATT")
    stamp(a, 5)
    a(f"s_lshl_b32 s{QT}, s{QBK}, 2")
    a(f"s_add_u32 s{QT}, s{QT}, s{U}")
    a(f"s_lshl_b32 s3, s{U}, 11")
    a(f"s_add_u32 s3, s3, {QLDS}")
    a("v_add_u32 v46, s3, v1")
    a(f"s_lshl_b32 s3, s{G}, 14")
    a(f"s_add_u32 s3, s3, {2*SLOT}")
    a(f"v_add_u32 v{VCUR}, s3, v1")
    a(f"v_add_u32 v{VNXT}, {SLOT}, v{VCUR}")
    a(f"v_add_u32 v47, {2*SLOT}, v1")
    for r in range(16):
        a(f"v_mov_b32 v{O+r}, 0")
    for r in range(4):
        a(f"v_mov_b32 v{PB_+4+r}, 0")
        a(f"v_mov_b32 v{VF+4+r}, 0")
    a(f"s_and_b32 s{PT}, s{W_}, 1")
    a(f"s_lshr_b32 s{KQ}, s{W_}, 1")
    a(f"s_lshl_b32 s3, s{U}, 12")
    a(f"s_add_u32 s3, s3, {MREG+8192}")
    a(f"v_add_u32 v{VX1}, s3, v1")
    a(f"s_lshl_b32 s3, s{U}, 8")
    a(f"s_add_u32 s3, s3, {MREG+24576}")
    a(f"v_lshlrev_b32 v{VX2}, 2, v0")
    a(f"v_add_u32 v{VX2}, s3, v{VX2}")
    a("v_lshrrev_b32 v6, 5, v0")
    a("v_bfe_u32 v7, v0, 2, 2")
    a("v_lshl_add_u32 v6, v6, 2, v7")
    a("v_lshlrev_b32 v6, 7, v6")
    a("v_bfe_u32 v7, v0, 4, 1")
    a("v_lshl_add_u32 v6, v7, 5, v6")
    a("v_and_b32 v7, 3, v0")
    a("v_lshl_add_u32 v6, v7, 3, v6")
    a("v_bfe_u32 v7, v0, 3, 1")
    a(f"v_lshl_add_u32 v{VW0}, v7, 6, v6")
    a(f"s_mul_i32 s3, s{KQ}, {4*28*128}")
    a(f"v_add_u32 v{VW0}, s3, v{VW0}")
    a(f"v_xor_b32 v{VW1}, 64, v{VW0}")
    a(f"s_mul_i32 s3, s{PT}, {4*3*2048}")
    a(f"v_add_u32 v{VEX}, s3, v1")
    srd(a, 36, 16, OUT_BYTES)
    a("v_and_b32 v11, 31, v0")
    a(f"v_lshlrev_b32 v{VOA}, 1, v11")
    a(f"s_lshl_b32 s3, s{MB}, 6")
    a(f"s_add_u32 s60, s3, s{PT}")
    a(f"v_add_u32 v{VOA}, s60, v{VOA}")
    a(f"s_lshl_b32 s60, s{PT}, 5")
    a("s_add_u32 s60, s60, s3")
    a(f"v_add_u32 v{VOB}, s60, v11")
    a(f"v_mul_u32_u24 v{VOA}, 1792, v{VOA}")
    a(f"v_mul_u32_u24 v{VOB}, 1792, v{VOB}")
    a("v_lshrrev_b32 v11, 5, v0")
    a(f"v_lshl_add_u32 v{VOA}, v11, 4, v{VOA}")
    a(f"v_lshl_add_u32 v{VOB}, v11, 4, v{VOB}")
    a(f"s_lshl_b32 s60, s{NB}, 7")
    a(f"s_lshl_b32 s3, s{KQ}, 5")
    a("s_add_u32 s60, s60, s3")
    a("s_add_u32 s61, s60, 896")
    a(f"s_lshl_b32 s3, s{MB}, 1")
    a(f"s_add_u32 s3, s3, s{PT}")
    a("s_lshl_b32 s59, s3, 15")
    a("s_lshl_b32 s3, s3, 7")
    a(f"s_lshl_b32 s56, s{KQ}, 5")
    a("s_add_u32 s3, s3, s56")
    a(f"s_add_u32 s3, s3, {FOB_OFF:#x}")
    a(f"v_lshlrev_b32 v{VFOB}, 2, v0")
    a(f"v_add_u32 v{VFOB}, s3, v{VFOB}")
    a(f"s_lshl_b32 s56, s{KQ}, 13")
    a("s_add_u32 s59, s59, s56")
    a(f"s_add_u32 s59, s59, {OFB:#x}")
    a(f"s_lshl_b32 s58, s{PT}, 5")
    a(f"s_add_u32 s58, s58, s{MB}")
    a("s_lshl_b32 s58, s58, 15")
    a("s_add_u32 s58, s58, s56")
    a(f"s_add_u32 s58, s58, {OFA:#x}")
    a(f"s_lshl_b32 s57, s{QT}, 4")
    a(f"s_add_u32 s57, s57, s{H_}")
    a("s_lshl_b32 s57, s57, 1")
    a(f"s_add_u32 s57, s57, s{G}")
    a("s_lshl_b32 s56, s57, 2")
    a(f"s_add_u32 s56, s56, {FOB_OFF:#x}")
    a("s_lshl_b32 s57, s57, 10")
    a(f"s_add_u32 s57, s57, {OFB:#x}")
    a("s_barrier")
    stamp(a, 6)
    a(f"ds_read_b128 {vr(Q0,4)}, v46")
    a(f"ds_read_b128 {vr(Q1,4)}, v46 offset:1024")
    a(f"ds_read_b128 {vr(KF,4)}, v47")
    a(f"ds_read_b128 {vr(KF+4,4)}, v47 offset:1024")
    a("s_waitcnt lgkmcnt(0)")
    mfma(a, SB, KF, Q0, 0)
    mfma(a, SB, KF + 4, Q1)
    a(f"ds_read_b128 {vr(KF,4)}, v{VCUR}")
    a(f"ds_read_b128 {vr(KF+4,4)}, v{VCUR} offset:1024")
    a("s_nop 15")
    max16(a, T0, SB)
    xhalf_max(a, T0, T1)
    a(f"v_add_f32 v{T0}, {f32bits(M_OFF):#x}, v{T0}")
    for r in range(16):
        a(f"v_sub_f32 v{CM+r}, 0, v{T0}")
    a("s_waitcnt lgkmcnt(0)")
    a("s_nop 0")
    mfma(a, SA, KF, Q0, CM)
    mfma(a, SA, KF + 4, Q1)
    a(f"ds_read_b128 {vr(KF,4)}, v{VCUR} offset:4096")
    a(f"ds_read_b128 {vr(KF+4,4)}, v{VCUR} offset:5120")
    a(f"ds_read_b128 {vr(VF,4)}, v{VCUR} offset:2048")
    a("s_mov_b32 s54, 0")
    a("s_nop 15")

    def step(j, sc, sn):
        PA = PA_ if j % 2 == 0 else PB_
        PB = PB_ if j % 2 == 0 else PA_
        VB = VF + 4
        if j == 2:
            a("s_waitcnt vmcnt(0)")
            a("s_barrier")
        a("s_waitcnt lgkmcnt(1)")
        mfma(a, sn, KF, Q0, CM)
        for r in range(0, 4):
            a(f"v_exp_f32 v{sc+r}, v{sc+r}")
        mfma(a, sn, KF + 4, Q1)
        kb, ko = (VCUR, (j + 2) * 4096) if j + 2 < 4 else (VNXT, (j + 2 - 4) * 4096)
        a(f"ds_read_b128 {vr(KF,4)}, v{kb} offset:{ko}")
        a(f"ds_read_b128 {vr(KF+4,4)}, v{kb} offset:{ko+1024}")
        for r in range(4, 8):
            a(f"v_exp_f32 v{sc+r}, v{sc+r}")
        a(f"v_cvt_pk_bf16_f32 v{PA+0}, v{sc+0}, v{sc+1}")
        a(f"v_cvt_pk_bf16_f32 v{PA+1}, v{sc+2}, v{sc+3}")
        mfma(a, O, VB, PB + 4)
        a(f"ds_read_b128 {vr(VB,4)}, v{VCUR} offset:{j*4096+3072}")
        for r in range(8, 12):
            a(f"v_exp_f32 v{sc+r}, v{sc+r}")
        a(f"v_cvt_pk_bf16_f32 v{PA+2}, v{sc+4}, v{sc+5}")
        a(f"v_cvt_pk_bf16_f32 v{PA+3}, v{sc+6}, v{sc+7}")
        for r in range(12, 14):
            a(f"v_exp_f32 v{sc+r}, v{sc+r}")
        a("s_waitcnt lgkmcnt(3)")
        mfma(a, O, VF, PA)
        vb, vo = (VCUR, (j + 1) * 4096 + 2048) if j + 1 < 4 else (VNXT, 2048)
        a(f"ds_read_b128 {vr(VF,4)}, v{vb} offset:{vo}")
        for r in range(14, 16):
            a(f"v_exp_f32 v{sc+r}, v{sc+r}")
        for q in range(4, 8):
            a(f"v_cvt_pk_bf16_f32 v{PA+q}, v{sc+2*q}, v{sc+2*q+1}")

    a.label("C_LOOP")
    step(0, SA, SB)
    step(1, SB, SA)
    step(2, SA, SB)
    step(3, SB, SA)
    a(f"v_mov_b32 v{VCUR}, v{VNXT}")
    a(f"v_add_u32 v{VNXT}, {SLOT}, v{VNXT}")
    a(f"v_and_b32 v{VNXT}, {4*SLOT-1:#x}, v{VNXT}")
    a("s_add_u32 s54, s54, 1")
    a("s_cmp_lt_u32 s54, 8")
    a("s_cbranch_scc1 C_LOOP")
    a("s_waitcnt lgkmcnt(0)")
    mfma(a, O, VF + 4, PB_ + 4)
    stamp(a, 7)
    a("s_cmp_ge_u32 s2, 224")
    a("s_cbranch_scc1 C_NOOA")
    a("s_add_u32 s3, s58, 4096")
    for i in range(8):
        a(f"buffer_load_dwordx4 {vr(OFR+4*i,4)}, v1, {WS}, s{58 if i < 4 else 3} offen offset:{(i%4)*1024} sc1")
    a.label("C_NOOA")
    a("s_nop 13")
    a(f"s_cmp_eq_u32 s{G}, 1")
    a("s_cbranch_scc1 C_G1")
    a(f"ds_write_b128 v{VX1}, {vr(O+8,4)}")
    a(f"ds_write_b128 v{VX1}, {vr(O+12,4)} offset:1024")
    a("s_waitcnt lgkmcnt(0)")
    a("s_barrier")
    a(f"ds_read_b128 {vr(SA,4)}, v{VX1} offset:2048")
    a(f"ds_read_b128 {vr(SA+4,4)}, v{VX1} offset:3072")
    a(f"ds_read_b32 v{T0}, v{VX2}")
    a("s_waitcnt lgkmcnt(0)")
    a(f"v_add_f32 v{T0}, v{T0}, v{O+12}")
    for r in range(8):
        a(f"v_add_f32 v{SA+r}, v{SA+r}, v{O+r}")
    a("s_branch C_FIN")
    a.label("C_G1")
    a(f"ds_write_b128 v{VX1}, {vr(O,4)} offset:2048")
    a(f"ds_write_b128 v{VX1}, {vr(O+4,4)} offset:3072")
    a(f"ds_write_b32 v{VX2}, v{O+12}")
    a("s_waitcnt lgkmcnt(0)")
    a("s_barrier")
    a(f"ds_read_b128 {vr(SA,4)}, v{VX1}")
    a(f"ds_read_b128 {vr(SA+4,4)}, v{VX1} offset:1024")
    a("s_waitcnt lgkmcnt(0)")
    for r in range(8):
        a(f"v_add_f32 v{SA+r}, v{SA+r}, v{O+8+r}")
    a(f"v_mov_b32 v{T0}, v{SA+4}")
    a.label("C_FIN")
    a(f"v_mov_b32 v{T1}, v{T0}")
    a("s_nop 1")
    a(f"v_permlane32_swap_b32 v{T0}, v{T1}")
    a("s_nop 1")
    a(f"v_mul_f32 v{T0}, 0, v{T1}")
    for r in range(8):
        a(f"v_fma_f32 v{T0}, v{SA+r}, 0, v{T0}")
    a(f"v_cmp_u_f32 vcc, v{T0}, v{T0}")
    a("s_nop 4")
    a("s_cbranch_vccnz C_FALLBACK")
    a.label("C_STORE")
    a(f"v_rcp_f32 v{T1}, v{T1}")
    a("s_nop 0")
    for r in range(8):
        a(f"v_mul_f32 v{SA+r}, v{SA+r}, v{T1}")
    for j in range(4):
        a(f"v_cvt_pk_bf16_f32 v{4+j}, v{SA+2*j}, v{SA+2*j+1}")
    a(f"s_cmp_eq_u32 s{G}, 0")
    a("s_cbranch_scc1 C_NOPAD")
    a("s_mov_b32 exec_lo, 0")
    a("v_mov_b32 v6, 0")
    a("v_mov_b32 v7, 0")
    a("s_mov_b32 exec_lo, -1")
    a.label("C_NOPAD")
    a(f"buffer_store_dwordx4 v[4:7], v1, {WS}, s57 offen sc1")
    stamp(a, 8)
    WOF, PACC = 16, 80
    a("s_cmp_ge_u32 s2, 224")
    a("s_cbranch_scc0 C_PROJ")
    a("s_waitcnt vmcnt(0)")
    flag_store(a, 56)
    a("s_branch C_DONE")
    a.label("C_PROJ")
    OSC = {0: "", 1: " sc1", 2: " nt"}[OPT["outsc"]]

    def wo_reads():
        for s in range(8):
            hd, f = s // 2, s % 2
            for nt, b in enumerate((8, 9)):
                for t in range(2):
                    off = (28 * hd + 16 * f + 8 * t) * 128
                    a(f"ds_read_b64_tr_b16 {vr(WOF+8*s+4*nt+2*t,2)}, v{b} offset:{off}")

    def proj_mfma(wait_vm):
        for s in range(8):
            if wait_vm:
                a(f"s_waitcnt vmcnt({7-s})")
            for nt in range(2):
                mfma(a, PACC + 16 * nt, WOF + 8 * s + 4 * nt, OFR + 4 * s, 0 if s == 0 else None)

    def part_write(tag, base):
        a(f"v_add_u32 v10, {base:#x}, v{VEX}")
        for kq in range(4):
            a(f"s_cmp_lg_u32 s{KQ}, {kq}")
            a(f"s_cbranch_scc1 C_PX{tag}{kq}")
            for d in range(4):
                if d == kq:
                    continue
                idx = kq if kq < d else kq - 1
                off = (d * 3 + idx) * 2048
                a(f"ds_write_b128 v10, {vr(PACC+8*d,4)} offset:{off}")
                a(f"ds_write_b128 v10, {vr(PACC+8*d+4,4)} offset:{off+1024}")
            if kq:
                for r in range(8):
                    a(f"v_mov_b32 v{PACC+r}, v{PACC+8*kq+r}")
            a.label(f"C_PX{tag}{kq}")
        a(f"s_mul_i32 s3, s{KQ}, {3*2048}")
        a("v_add_u32 v11, s3, v10")

    def part_final(vout, sout):
        R = PACC + 8
        for idx in range(3):
            a(f"ds_read_b128 {vr(R+8*idx,4)}, v11 offset:{idx*2048}")
            a(f"ds_read_b128 {vr(R+8*idx+4,4)}, v11 offset:{idx*2048+1024}")
        for idx in range(3):
            a(f"s_waitcnt lgkmcnt({4-2*idx})")
            for r in range(8):
                a(f"v_add_f32 v{PACC+r}, v{PACC+r}, v{R+8*idx+r}")
        for j in range(4):
            a(f"v_cvt_pk_bf16_f32 v{12+j}, v{PACC+2*j}, v{PACC+2*j+1}")
        a("s_nop 1")
        a("v_permlane32_swap_b32 v12, v14")
        a("v_permlane32_swap_b32 v13, v15")
        a("s_nop 1")
        a(f"buffer_store_dwordx4 v[12:15], v{vout}, s[36:39], s{sout} offen{OSC}")

    a(f"v_add_u32 v8, {2*SLOT}, v{VW0}")
    a(f"v_add_u32 v9, {2*SLOT}, v{VW1}")
    wo_reads()
    a("s_waitcnt vmcnt(0)")
    flag_store(a, 56)
    a("s_waitcnt lgkmcnt(0)")
    stamp(a, 9)
    proj_mfma(False)
    a("s_barrier")
    a("s_nop 13")
    part_write("A", 2 * SLOT)
    a(f"v_mov_b32 v8, v{VW0}")
    a(f"v_mov_b32 v9, v{VW1}")
    wo_reads()
    a("s_waitcnt lgkmcnt(0)")
    a("s_barrier")
    part_final(VOA, 60)
    stamp(a, 10)
    gpoll(a, VFOB, 0xff, 0, FU, sleep=1)
    stamp(a, 11)
    a("s_add_u32 s3, s59, 4096")
    for i in range(8):
        a(f"buffer_load_dwordx4 {vr(OFR+4*i,4)}, v1, {WS}, s{59 if i < 4 else 3} offen offset:{(i%4)*1024} sc1")
    proj_mfma(True)
    a("s_nop 15")
    a("s_nop 3")
    part_write("B", 112 * 1024)
    a("s_waitcnt lgkmcnt(0)")
    a("s_barrier")
    part_final(VOB, 61)
    a(f"s_or_b32 s3, s2, s{W_}")
    a("s_cmp_lg_u32 s3, 0")
    a("s_cbranch_scc1 C_DONE")
    a(f"s_mov_b32 s3, {FL:#x}")
    flag_store(a, 3)
    a.label("C_DONE")
    stamp(a, 12)
    if STAMP:
        a("s_waitcnt vmcnt(0)")
    stamp(a, 13)
    stamp(a, 14, True)
    stamp_flush(a, 15)
    a("s_endpgm")

    a.label("C_FALLBACK")
    a(f"s_lshl_b32 s62, s{H_}, 18")
    a(f"s_add_u32 s62, s62, {KVB:#x}")
    a(f"s_mov_b32 s3, {NEG_BIG:#x}")
    a(f"v_mov_b32 v{T0}, s3")
    a("s_mov_b32 s55, 0")
    a("s_mov_b32 s3, s62")
    a.label("C_FB1")
    a(f"buffer_load_dwordx4 {vr(KF,4)}, v1, {WS}, s3 offen sc1")
    a(f"buffer_load_dwordx4 {vr(KF+4,4)}, v1, {WS}, s3 offen offset:1024 sc1")
    a("s_waitcnt vmcnt(0)")
    mfma(a, SB, KF, Q0, 0)
    mfma(a, SB, KF + 4, Q1)
    a("s_nop 15")
    a("s_nop 3")
    max16(a, T1, SB, extra=[T0])
    a(f"v_mov_b32 v{T0}, v{T1}")
    a("s_add_u32 s3, s3, 4096")
    a("s_add_u32 s55, s55, 1")
    a("s_cmp_lt_u32 s55, 64")
    a("s_cbranch_scc1 C_FB1")
    xhalf_max(a, T0, T1)
    for r in range(16):
        a(f"v_sub_f32 v{CM+r}, 0, v{T0}")
    for r in range(16):
        a(f"v_mov_b32 v{O+r}, 0")
    a("s_mov_b32 s55, 0")
    a("s_mov_b32 s3, s62")
    a.label("C_FB2")
    a(f"buffer_load_dwordx4 {vr(KF,4)}, v1, {WS}, s3 offen sc1")
    a(f"buffer_load_dwordx4 {vr(KF+4,4)}, v1, {WS}, s3 offen offset:1024 sc1")
    a(f"buffer_load_dwordx4 {vr(VF,4)}, v1, {WS}, s3 offen offset:2048 sc1")
    a(f"buffer_load_dwordx4 {vr(VF+4,4)}, v1, {WS}, s3 offen offset:3072 sc1")
    a("s_waitcnt vmcnt(0)")
    mfma(a, SB, KF, Q0, CM)
    mfma(a, SB, KF + 4, Q1)
    a("s_nop 15")
    a("s_nop 3")
    for r in range(16):
        a(f"v_exp_f32 v{SB+r}, v{SB+r}")
    a("s_nop 0")
    for q in range(8):
        a(f"v_cvt_pk_bf16_f32 v{PA_+q}, v{SB+2*q}, v{SB+2*q+1}")
    a("s_nop 1")
    mfma(a, O, VF, PA_)
    mfma(a, O, VF + 4, PA_ + 4)
    a("s_add_u32 s3, s3, 4096")
    a("s_add_u32 s55, s55, 1")
    a("s_cmp_lt_u32 s55, 64")
    a("s_cbranch_scc1 C_FB2")
    a("s_nop 15")
    a("s_nop 3")
    a(f"v_mov_b32 v{T0}, v{O+12}")
    a(f"v_mov_b32 v{T1}, v{O+12}")
    a("s_nop 1")
    a(f"v_permlane32_swap_b32 v{T0}, v{T1}")
    a(f"s_cmp_eq_u32 s{G}, 0")
    a("s_cbranch_scc1 C_FB3")
    for r in range(8):
        a(f"v_mov_b32 v{O+r}, v{O+8+r}")
    a.label("C_FB3")
    for r in range(8):
        a(f"v_mov_b32 v{SA+r}, v{O+r}")
    a("s_branch C_STORE")


def gen_helper(a):
    E, CC, XS, WSO, LX, LW, SL, N = 48, 49, 50, 51, 52, 53, 54, 55
    VFULL, VCNT, TMP = 163, 162, 144
    a("s_setprio 3")
    a(f"s_sub_u32 s{E}, s{W_}, 8")
    a("v_lshrrev_b32 v2, 3, v0")
    a("v_and_b32 v3, 7, v0")
    a("v_lshrrev_b32 v12, 4, v0")
    for i in range(4):
        a(f"v_add_u32 v13, {4*i}, v12")
        a("v_and_b32 v13, 7, v13")
        a("v_xor_b32 v13, v13, v3")
        a(f"v_add_u32 v14, {8*i}, v2")
        a(f"v_mul_u32_u24 v{8+i}, 896, v14")
        a(f"v_lshl_add_u32 v{4+i}, v13, 4, v{8+i}")
    a("s_mov_b32 s3, 5462")
    for i in range(3):
        a(f"v_add_u32 v15, {64*i}, v0")
        a("v_mul_lo_u32 v16, v15, s3")
        a("v_lshrrev_b32 v16, 16, v16")
        a("v_mul_u32_u24 v17, 12, v16")
        a("v_sub_u32 v15, v15, v17")
        a("v_min_u32 v15, 10, v15")
        a("v_mul_u32_u24 v16, 2688, v16")
        a(f"v_lshl_add_u32 v{12+i}, v15, 4, v16")
    a(f"s_lshl_b32 s{XS}, s{M_}, 2")
    a(f"s_add_u32 s{XS}, s{XS}, s{E}")
    a(f"s_mul_i32 s{XS}, s{XS}, {32*896}")
    a(f"s_mul_i32 s{WSO}, s{TR}, 168")
    a(f"s_andn2_b32 s{WSO}, s{WSO}, 15")
    a(f"s_mul_i32 s3, s{E}, {16*2688}")
    a(f"s_add_u32 s{WSO}, s{WSO}, s3")
    a(f"s_lshl_b32 s{LX}, s{E}, 12")
    a(f"s_mul_i32 s{LW}, s{E}, 3072")
    a(f"s_add_u32 s{LW}, s{LW}, 16384")
    a(f"s_lshl_b32 s{CC}, s{TR}, 1")
    a(f"s_add_u32 s{CC}, s{CC}, s{M_}")
    a(f"s_mul_i32 s3, s{CC}, 37")
    a("s_lshr_b32 s3, s3, 8")
    a("s_mul_i32 s3, s3, 7")
    a(f"s_sub_u32 s{CC}, s{CC}, s3")
    a(f"s_mov_b32 s{SL}, {2*GS}")
    a(f"s_mov_b32 s{N}, 0")
    a("s_waitcnt lgkmcnt(0)")
    stamp(a, 0)
    stamp(a, 1, True)
    srd(a, 28, 10, X_BYTES)
    srd(a, 32, 12, W_BYTES)

    def gemm_issue():
        a(f"s_lshl_b32 s56, s{CC}, 7")
        a(f"s_add_u32 s56, s56, s{XS}")
        a(f"s_mul_i32 s57, s{CC}, {64*2688}")
        a(f"s_add_u32 s57, s57, s{WSO}")
        a(f"s_add_u32 s58, s{SL}, s{LX}")
        a(f"s_add_u32 s59, s{SL}, s{LW}")
        for i in range(4):
            a(f"s_add_u32 m0, s58, {i*1024}")
            a("s_nop 0")
            a(f"buffer_load_dwordx4 v{4+i}, s[28:31], s56 offen lds")
        for i in range(3):
            a(f"s_add_u32 m0, s59, {i*1024}")
            a("s_nop 0")
            a(f"buffer_load_dwordx4 v{12+i}, s[32:35], s57 offen lds")
        a(f"s_add_u32 s{CC}, s{CC}, 1")
        a(f"s_cmp_eq_u32 s{CC}, 7")
        a(f"s_cselect_b32 s{CC}, 0, s{CC}")
        a(f"s_add_u32 s{SL}, s{SL}, {GS}")
        a(f"s_cmp_eq_u32 s{SL}, {NGS*GS}")
        a(f"s_cselect_b32 s{SL}, 0, s{SL}")

    def publish(val):
        a(f"v_mov_b32 v{VCNT}, {val}")
        a(f"ds_write_b32 v{VFULL}, v{VCNT}")

    def flag_addr(dst, shead, base):
        a(f"v_lshrrev_b32 v{dst}, 4, v0")
        a(f"v_lshlrev_b32 v{dst}, 4, v{dst}")
        a(f"v_add_u32 v{dst}, s{shead}, v{dst}")
        a(f"v_mul_u32_u24 v{dst}, 171, v{dst}")
        a(f"v_lshrrev_b32 v{dst}, 9, v{dst}")
        a(f"v_min_u32 v{dst}, 15, v{dst}")
        a(f"v_lshlrev_b32 v{dst}, 7, v{dst}")
        a("v_and_b32 v19, 15, v0")
        a(f"v_lshl_add_u32 v{dst}, v19, 2, v{dst}")
        a(f"v_add_u32 v{dst}, {base:#x}, v{dst}")

    def shared_gpoll(k, vaddr, mlo, mhi, sleep=2):
        L = a.new("SG")
        a(f"s_cmp_lg_u32 s{E}, 0")
        a(f"s_cbranch_scc1 {L}")
        gpoll(a, vaddr, mlo, mhi, 19, sleep=sleep)
        a(f"v_mov_b32 v{VCNT}, 1")
        a(f"ds_write_b32 v{VSY}, v{VCNT} offset:{96+4*k}")
        a(f"s_branch {L}_J")
        a.label(L)
        lpoll(a, 96 + 4 * k, 1, 1, TMP, sleep=sleep)
        a.label(L + "_J")

    def switch_a():
        srd(a, 28, 4, X_BYTES)
        srd(a, 32, 6, W_BYTES)
        for i in range(4):
            a(f"v_add_u32 v{4+i}, v{4+i}, v{8+i}")
        a(f"s_lshl_b32 s{XS}, s{M_}, 7")
        a(f"s_lshr_b32 s3, s{E}, 1")
        a("s_lshl_b32 s3, s3, 6")
        a(f"s_add_u32 s{XS}, s{XS}, s3")
        a(f"s_and_b32 s3, s{E}, 1")
        a(f"s_add_u32 s{XS}, s{XS}, s3")
        a(f"s_mul_i32 s{XS}, s{XS}, 896")

    gemm_issue()
    common_late(a)
    a(f"s_lshl_b32 s3, s{E}, 2")
    a(f"s_add_u32 s3, s3, {SY:#x}")
    a(f"v_mov_b32 v{VFULL}, s3")
    flag_addr(18, H_, FB_OFF)
    a(f"s_lshl_b32 s61, s{TR}, 7")
    a(f"s_lshl_b32 s3, s{M_}, 2")
    a("s_add_u32 s61, s61, s3")
    a(f"s_add_u32 s61, s61, {FB_OFF:#x}")
    a(f"s_mov_b32 s{N}, 1")
    if ASYNC:
        a("s_barrier")
    a.label("H_GL")
    if ASYNC:
        a(f"s_cmp_lt_u32 s{N}, {NGS}")
        a("s_cbranch_scc1 H_NOFREE")
        a(f"s_sub_u32 s60, s{N}, {NGS-1}")
        lpoll(a, 16, 8, "s60", TMP, sleep=0)
        a.label("H_NOFREE")
    else:
        a(f"s_cmp_lt_u32 s{N}, 2")
        a("s_cbranch_scc1 H_NOBAR")
        a(f"s_cmp_eq_u32 s{N}, 3")
        a("s_cbranch_scc1 H_NOBAR")
        a(f"s_cmp_eq_u32 s{N}, 2")
        a("s_cbranch_scc1 H_W7")
        a("s_waitcnt vmcnt(14)")
        a("s_branch H_W")
        a.label("H_W7")
        a("s_waitcnt vmcnt(7)")
        a.label("H_W")
        a("s_barrier")
        a(f"s_cmp_lg_u32 s{N}, {OPT['fbn']+4}")
        a("s_cbranch_scc1 H_NOBAR")
        a(f"s_cmp_lg_u32 s{E}, 0")
        a("s_cbranch_scc1 H_NOBAR")
        flag_store(a, 61)
        a.label("H_NOBAR")
    a(f"s_cmp_lg_u32 s{N}, 7")
    a("s_cbranch_scc1 H_NOSW")
    switch_a()
    a.label("H_NOSW")
    gemm_issue()
    if ASYNC:
        a(f"s_cmp_lt_u32 s{N}, 2")
        a("s_cbranch_scc1 H_NOPUB")
        a("s_waitcnt vmcnt(14)")
        a(f"s_sub_u32 s60, s{N}, 1")
        publish("s60")
        lstamp(a, "s60")
        a.label("H_NOPUB")
    else:
        a(f"s_cmp_lg_u32 s{N}, 3")
        a("s_cbranch_scc1 H_NOT3")
        tag_finish(a)
        a.label("H_NOT3")
    a(f"s_add_u32 s{N}, s{N}, 1")
    a(f"s_cmp_lt_u32 s{N}, 14")
    a("s_cbranch_scc1 H_GL")
    if ASYNC:
        a("s_waitcnt vmcnt(7)")
        publish(13)
        tag_finish(a)
        a("s_waitcnt vmcnt(0)")
        publish(14)
    else:
        a("s_waitcnt vmcnt(14)")
        a("s_barrier")
        a("s_waitcnt vmcnt(7)")
        a("s_barrier")
        a("s_waitcnt vmcnt(0)")
        a("s_barrier")
    stamp(a, 4)
    shared_gpoll(0, 18, 0xffffffff, 0xffff, sleep=1)
    stamp(a, 5)
    KVS = 50
    a(f"s_lshl_b32 s{KVS}, s{H_}, 18")
    a(f"s_add_u32 s{KVS}, s{KVS}, {KVB:#x}")
    a(f"s_lshl_b32 s{LX}, s{E}, 13")
    a(f"s_add_u32 s{KVS}, s{KVS}, s{LX}")

    def kv_issue(c):
        slot = (2 + c) % 4
        a(f"s_add_u32 s56, s{QBK}, {c}")
        a("s_and_b32 s56, s56, 7")
        a("s_lshl_b32 s56, s56, 15")
        a(f"s_add_u32 s56, s56, s{KVS}")
        a("s_add_u32 s57, s56, 4096")
        for half in range(2):
            a(f"s_add_u32 m0, s{LX}, {slot*SLOT + half*4096}")
            a("s_nop 0")
            for i in range(4):
                a(f"buffer_load_dwordx4 v1, {WS}, s{56+half} offen offset:{i*1024} sc1 lds")

    a(f"s_lshl_b32 s56, s{H_}, 6")
    a(f"s_lshl_b32 s3, s{QBK}, 2")
    a("s_add_u32 s56, s56, s3")
    a(f"s_add_u32 s56, s56, s{E}")
    a("s_lshl_b32 s56, s56, 11")
    a(f"s_lshl_b32 s3, s{E}, 11")
    a(f"s_add_u32 m0, s3, {QLDS}")
    a("s_nop 0")
    for i in range(2):
        a(f"buffer_load_dwordx4 v1, {WS}, s56 offen offset:{i*1024} sc1 lds")
    if ASYNC:
        lpoll(a, 16, 8, 12, TMP, sleep=0)
    kv_issue(0)
    HA, TA, TT_ = H_, 60, 63
    a(f"s_lshl_b32 s{TA}, s{QBK}, 2")
    a(f"s_add_u32 s{TA}, s{TA}, s{E}")
    a(f"s_and_b32 s{TT_}, s{TA}, 31")
    a(f"v_add_u32 v18, {FA_OFF-FB_OFF:#x}, v18")
    a(f"s_add_u32 s61, s61, {FA_OFF-FB_OFF:#x}")
    a("v_lshrrev_b32 v20, 3, v0")
    a("v_mul_u32_u24 v20, 896, v20")
    a("v_and_b32 v19, 7, v0")
    a("v_bfe_u32 v21, v0, 4, 1")
    a("v_lshlrev_b32 v21, 2, v21")
    a("v_xor_b32 v19, v19, v21")
    a("v_lshl_add_u32 v20, v19, 4, v20")
    AQ, AKC, AVC, AKP, AVP = 24, 32, 40, 48, 56
    CCR, CPR, AO, AP, APP, T0, T1 = 64, 80, 96, 112, 120, 124, 125
    a(f"s_mov_b32 s3, {NEG_BIG:#x}")
    for r in range(16):
        a(f"v_mov_b32 v{CCR+r}, s3")
    for r in range(12, 16):
        a(f"v_mov_b32 v{CPR+r}, s3")
    for r in range(12):
        a(f"v_mov_b32 v{CPR+r}, 0")
    for r in range(16):
        c = (r & 3) + 8 * (r >> 2)
        a(f"s_mov_b32 exec_lo, {(0xFF << c) & 0xFFFFFFFF:#x}")
        a(f"s_mov_b32 exec_hi, {(0xFF << (c + 4)) & 0xFFFFFFFF:#x}")
        a(f"v_mov_b32 v{CCR+r}, 0")
    a(f"s_cmp_eq_u32 s{TT_}, 0")
    a("s_cbranch_scc1 H_NOPREV")
    for r in range(12, 16):
        a(f"s_mov_b32 exec_lo, {(1 << (r & 3)) - 1:#x}")
        a(f"s_mov_b32 exec_hi, {(1 << ((r & 3) + 4)) - 1:#x}")
        a(f"v_mov_b32 v{CPR+r}, 0")
    a.label("H_NOPREV")
    a("s_mov_b64 exec, -1")
    a("s_waitcnt vmcnt(0)")
    a("s_barrier")
    stamp(a, 6)
    kv_issue(1)
    kv_issue(2)
    a("s_waitcnt vmcnt(8)")
    a("s_barrier")
    kv_issue(3)
    a(f"s_cmp_lg_u32 s{E}, 0")
    a("s_cbranch_scc1 H_NOFA")
    flag_store(a, 61)
    a.label("H_NOFA")
    for c in (4, 5, 6):
        a("s_waitcnt vmcnt(8)")
        a("s_barrier")
        kv_issue(c)
    shared_gpoll(1, 18, 0xffffffff, 0xffff, sleep=2)
    a("s_waitcnt vmcnt(8)")
    a(f"s_lshl_b32 s3, s{HA}, 6")
    a(f"s_add_u32 s3, s3, s{TA}")
    a("s_lshl_b32 s57, s3, 11")
    a(f"s_add_u32 s57, s57, {QA:#x}")
    a("s_lshl_b32 s58, s3, 12")
    a(f"s_add_u32 s58, s58, {KVA:#x}")
    a("s_sub_u32 s59, s58, 4096")
    a(f"s_cmp_eq_u32 s{TT_}, 0")
    a("s_cselect_b32 s59, s58, s59")
    for (reg, so, off) in ((AQ, 57, 0), (AQ + 4, 57, 1024), (AKC, 58, 0), (AKC + 4, 58, 1024), (AKP, 59, 0),
                           (AKP + 4, 59, 1024), (AVC, 58, 2048), (AVC + 4, 58, 3072), (AVP, 59, 3072)):
        a(f"buffer_load_dwordx4 {vr(reg,4)}, v1, {WS}, s{so} offen offset:{off} sc1")
    a("s_barrier")
    kv_issue(7)
    a("s_waitcnt vmcnt(11)")
    mfma(a, CCR, AKC, AQ)
    mfma(a, CPR, AKP, AQ)
    mfma(a, CCR, AKC + 4, AQ + 4)
    mfma(a, CPR, AKP + 4, AQ + 4)
    a("s_nop 15")
    a("s_nop 3")
    max16(a, T0, CCR, extra=[CPR + 12, CPR + 13, CPR + 14, CPR + 15])
    xhalf_max(a, T0, T1)
    rs = list(range(CCR, CCR + 16)) + list(range(CPR + 12, CPR + 16))
    for r in rs:
        a(f"v_sub_f32 v{r}, v{r}, v{T0}")
    for r in rs:
        a(f"v_exp_f32 v{r}, v{r}")
    a("s_nop 0")
    for j in range(8):
        a(f"v_cvt_pk_bf16_f32 v{AP+j}, v{CCR+2*j}, v{CCR+2*j+1}")
    a(f"v_mov_b32 v{APP}, 0")
    a(f"v_mov_b32 v{APP+1}, 0")
    a(f"v_cvt_pk_bf16_f32 v{APP+2}, v{CPR+12}, v{CPR+13}")
    a(f"v_cvt_pk_bf16_f32 v{APP+3}, v{CPR+14}, v{CPR+15}")
    a("s_waitcnt vmcnt(8)")
    a("s_nop 0")
    mfma(a, AO, AVC, AP, 0)
    mfma(a, AO, AVC + 4, AP + 4)
    mfma(a, AO, AVP, APP)
    a("s_nop 15")
    a("s_nop 3")
    a(f"v_mov_b32 v{T0}, v{AO+12}")
    a(f"v_mov_b32 v{T1}, v{AO+12}")
    a("s_nop 1")
    a(f"v_permlane32_swap_b32 v{T0}, v{T1}")
    a("s_nop 1")
    a(f"v_rcp_f32 v{T1}, v{T1}")
    a("s_nop 0")
    for r in range(16):
        a(f"v_mul_f32 v{AO+r}, v{AO+r}, v{T1}")
    for j in range(8):
        a(f"v_cvt_pk_bf16_f32 v{AP+j}, v{AO+2*j}, v{AO+2*j+1}")
    a("s_mov_b32 exec_lo, 0")
    a(f"v_mov_b32 v{AP+6}, 0")
    a(f"v_mov_b32 v{AP+7}, 0")
    a("s_mov_b32 exec_lo, -1")
    a(f"s_lshl_b32 s57, s{TA}, 4")
    a(f"s_add_u32 s57, s57, s{HA}")
    a("s_lshl_b32 s57, s57, 11")
    a(f"s_add_u32 s57, s57, {OFA:#x}")
    a(f"buffer_store_dwordx4 {vr(AP,4)}, v1, {WS}, s57 offen sc1")
    a(f"buffer_store_dwordx4 {vr(AP+4,4)}, v1, {WS}, s57 offen offset:1024 sc1")
    a(f"s_lshl_b32 s3, s{TT_}, 7")
    a(f"s_lshr_b32 s58, s{TA}, 5")
    a("s_lshl_b32 s58, s58, 4")
    a(f"s_add_u32 s58, s58, s{HA}")
    a("s_lshl_b32 s58, s58, 2")
    a("s_add_u32 s58, s58, s3")
    a(f"s_add_u32 s58, s58, {FOA_OFF:#x}")
    a("s_barrier")
    a("s_waitcnt vmcnt(0)")
    flag_store(a, 58)
    a("s_cmp_ge_u32 s2, 224")
    a("s_cbranch_scc1 H_NOPROJ")
    srd(a, 28, 8, WO_BYTES)
    srd(a, 32, 14, WO_BYTES)
    WOS = 50
    a(f"s_mul_i32 s{WOS}, s{E}, {64*896}")
    a(f"s_lshl_b32 s3, s{NB}, 7")
    a(f"s_add_u32 s{WOS}, s{WOS}, s3")

    def wo_issue(sr, slot, hf):
        for i in range(8):
            a(f"s_add_u32 s56, s{WOS}, {(hf*256 + i*8)*896}")
            a(f"s_add_u32 m0, s{LX}, {slot*SLOT + i*1024}")
            a("s_nop 0")
            a(f"buffer_load_dwordx4 v20, {sr}, s56 offen lds")

    a(f"s_lshl_b32 s3, s{MB}, 7")
    a(f"s_add_u32 s3, s3, {FOA_OFF:#x}")
    a("v_lshlrev_b32 v18, 2, v0")
    a("v_add_u32 v18, s3, v18")
    wo_issue("s[28:31]", 2, 0)
    a("s_barrier")
    wo_issue("s[28:31]", 3, 1)
    stamp(a, 7)
    shared_gpoll(2, 18, 0xffffffff, 0, sleep=2)
    stamp(a, 8)
    a("s_waitcnt vmcnt(0)")
    a("s_barrier")
    wo_issue("s[32:35]", 0, 0)
    a("s_barrier")
    wo_issue("s[32:35]", 1, 1)
    a("s_waitcnt vmcnt(0)")
    a("s_branch H_DONE")
    a.label("H_NOPROJ")
    a("s_barrier")
    a("s_barrier")
    a("s_barrier")
    a.label("H_DONE")
    stamp(a, 13)
    stamp(a, 14, True)
    stamp_flush(a, 15)
    a("s_endpgm")


HEADER = """; Kernarg layout for this problem (72 bytes, ptrs only, base s[0:1]):
"""


def main():
    out = sys.argv[1]
    a = Asm()
    a.raw(HEADER.rstrip())
    a.raw(f"; @launch grid=(256,1,1) block=(768,1,1) lds={LDS_BYTES}")
    a.raw('.amdgcn_target "amdgcn-amd-amdhsa--gfx950"')
    gen(a)
    open(out, "w").write(a.text())


if __name__ == "__main__":
    main()
```

```python
import math, struct, sys

NAME = "concat_heads__sliding_local_dilated__softmax_full_mha__prompt"
OPT = dict(grp=0, apf=0, sst=0, esl=0, wpf=0, daf=1, diag=0, b4=0, dsl=0, dsl2=0, noexp=0, efb=1, pp=1, tlb=0, shuf=0, rt=0, fsl=1, trs=2, cpf=1, stamp=0, dbg=0, sync="barrier", pre=0, map48=1, outsc=2, fbn=8, lst=0)
for x in sys.argv[2:]:
    k, v = x.split("=")
    OPT[k] = int(v) if v.lstrip("-").isdigit() else v
STAMP = OPT["stamp"] or OPT["dbg"]
ASYNC = OPT["sync"] == "async"


def f32bits(x):
    return struct.unpack("<I", struct.pack("<f", x))[0]


CSCALE = (28 ** -0.5) * math.log2(math.e)
QB, KVB, QA, KVA, OFA, OFB = 0x000000, 0x200000, 0x600000, 0x800000, 0xC00000, 0xE00000
FL = 0x1000000
FB_OFF, FA_OFF, FOA_OFF, FOB_OFF = FL + 0x1000, FL + 0x2000, FL + 0x3000, FL + 0x10000
STAMP_OFF = 0x1100000
WS_BYTES = 0x1020000
X_BYTES = 2048 * 448 * 2
W_BYTES = 448 * 1344 * 2
WO_BYTES = 448 * 448 * 2
OUT_BYTES = 2048 * 896 * 2
NEG_BIG = f32bits(-3.0e38)
M_OFF = 64.0
SLOT = 32768
GS = 28672
NGS = 5
MREG = 4 * SLOT
QLDS = NGS * GS
LDS_BYTES = MREG + 32768
SY = MREG + 0x7F00
POLL_MAX = 1 << 18
LPOLL_MAX = 1 << 22


class Asm:
    def __init__(self):
        self.lines = []
        self.uid = 0

    def __call__(self, s):
        self.lines.append("    " + s)

    def label(self, l):
        self.lines.append(l + ":")

    def raw(self, s):
        self.lines.append(s)

    def new(self, p):
        self.uid += 1
        return f"{p}_{self.uid}"

    def text(self):
        return "\n".join(self.lines) + "\n"


def vr(a, n):
    return f"v[{a}:{a+n-1}]"


def srd(a, d, ptr, nbytes):
    a(f"s_mov_b32 s{d}, s{ptr}")
    a(f"s_and_b32 s{d+1}, s{ptr+1}, 0xffff")
    a(f"s_mov_b32 s{d+2}, {nbytes:#x}")
    a(f"s_mov_b32 s{d+3}, 0x20000")


def mfma(a, d, A, B, C=None):
    c = "0" if C == 0 else vr(d if C is None else C, 16)
    a(f"v_mfma_f32_32x32x16_bf16 {vr(d,16)}, {vr(A,4)}, {vr(B,4)}, {c}")


def stamp(a, i, real=False):
    if not STAMP:
        return
    a(f"{'s_memrealtime' if (real or OPT['rt']) else 's_memtime'} s[{64+2*i}:{65+2*i}]")
    a("s_waitcnt lgkmcnt(0)")


def lstamp(a, sidx):
    if not OPT["lst"]:
        return
    a("s_memtime s[94:95]")
    a(f"s_mov_b32 m0, {sidx}")
    a("s_waitcnt lgkmcnt(0)")
    a("v_writelane_b32 v167, s94, m0")


def stamp_flush(a, n):
    if not STAMP:
        return
    a("s_waitcnt lgkmcnt(0)")
    if OPT["dbg"]:
        L = a.new("SF")
        a("s_cmp_lg_u32 s2, 37")
        a(f"s_cbranch_scc1 {L}")
        a(f"s_cmp_lg_u32 s{W_}, 0")
        a(f"s_cbranch_scc1 {L}")
        a("v_mov_b32 v0, 0")
        for i in range(n):
            base = 66 if i in (1, 14) else 64
            a(f"s_sub_u32 s60, s{64+2*i}, s{base}")
            a("v_mov_b32 v2, s60")
            a(f"global_store_dword v0, v2, s[18:19] offset:{4*i}")
            a("s_nop 1")
        a.label(L)
        return
    a("s_mul_i32 s60, s2, 12")
    a(f"s_add_u32 s60, s60, s{W_}")
    a("s_lshl_b32 s60, s60, 7")
    a(f"s_add_u32 s60, s60, {STAMP_OFF:#x}")
    a("v_mov_b32 v0, s60")
    for i in range(n):
        a(f"v_mov_b32 v2, s{64+2*i}")
        a(f"global_store_dword v0, v2, s[20:21] offset:{4*i}")
        a("s_nop 1")
    if OPT["lst"]:
        for i in range(16):
            a(f"v_readlane_b32 s61, v167, {i}")
            a("s_nop 3")
            a("v_mov_b32 v2, s61")
            a(f"global_store_dword v0, v2, s[20:21] offset:{64+4*i}")
            a("s_nop 1")


def max16(a, dst, S, extra=()):
    regs = [S + r for r in range(16)] + list(extra)
    a(f"v_max3_f32 v{dst}, v{regs[0]}, v{regs[1]}, v{regs[2]}")
    k = 3
    while k + 1 < len(regs):
        a(f"v_max3_f32 v{dst}, v{dst}, v{regs[k]}, v{regs[k+1]}")
        k += 2
    if k < len(regs):
        a(f"v_max_f32 v{dst}, v{dst}, v{regs[k]}")


def xhalf_max(a, m, t):
    a(f"v_mov_b32 v{t}, v{m}")
    a("s_nop 1")
    a(f"v_permlane32_swap_b32 v{m}, v{t}")
    a("s_nop 1")
    a(f"v_max_f32 v{m}, v{m}, v{t}")


WS = "s[24:27]"
W_, M_, TR, H_, QBK, MB, NB, TAG = 40, 41, 42, 43, 44, 45, 46, 47
VSY, VTAG, VZ = 164, 165, 166


def gpoll(a, vaddr, mlo, mhi, vtmp, sleep=4):
    L = a.new("GP")
    a(f"s_mov_b32 exec_lo, {mlo:#x}")
    a(f"s_mov_b32 exec_hi, {mhi:#x}")
    a(f"s_mov_b32 s62, {POLL_MAX}")
    a.label(L)
    a(f"buffer_load_dword v{vtmp}, v{vaddr}, {WS}, 0 offen sc1")
    a("s_waitcnt vmcnt(0)")
    a(f"v_cmp_ne_u32 vcc, s{TAG}, v{vtmp}")
    a("s_sub_u32 s62, s62, 1")
    a("s_nop 3")
    a(f"s_cbranch_vccz {L}_OK")
    a(f"s_sleep {sleep}")
    a("s_cmp_lg_u32 s62, 0")
    a(f"s_cbranch_scc1 {L}")
    a.label(L + "_OK")
    a("s_mov_b64 exec, -1")


def lpoll(a, off, nwords, thr, t, sleep=1):
    L = a.new("LP")
    a(f"s_mov_b32 s62, {LPOLL_MAX}")
    a.label(L)
    if nwords == 1:
        a(f"ds_read_b32 v{t}, v{VSY} offset:{off}")
        a("s_waitcnt lgkmcnt(0)")
    else:
        a(f"ds_read_b128 {vr(t,4)}, v{VSY} offset:{off}")
        if nwords == 8:
            a(f"ds_read_b128 {vr(t+4,4)}, v{VSY} offset:{off+16}")
        a("s_waitcnt lgkmcnt(0)")
        a(f"v_min3_u32 v{t}, v{t}, v{t+1}, v{t+2}")
        if nwords == 8:
            a(f"v_min3_u32 v{t}, v{t}, v{t+3}, v{t+4}")
            a(f"v_min3_u32 v{t}, v{t}, v{t+5}, v{t+6}")
            a(f"v_min_u32 v{t}, v{t}, v{t+7}")
        else:
            a(f"v_min_u32 v{t}, v{t}, v{t+3}")
    a(f"v_cmp_gt_u32 vcc, {thr}, v{t}")
    a("s_sub_u32 s62, s62, 1")
    a("s_nop 3")
    a(f"s_cbranch_vccz {L}_OK")
    if sleep:
        a(f"s_sleep {sleep}")
    a("s_cmp_lg_u32 s62, 0")
    a(f"s_cbranch_scc1 {L}")
    a.label(L + "_OK")


def flag_store(a, soff):
    a("s_mov_b64 exec, 1")
    a(f"buffer_store_dword v{VTAG}, v{VZ}, {WS}, s{soff} offen sc1")
    a("s_mov_b64 exec, -1")


def fob_store(a):
    a("s_mov_b64 exec, 0x7f")
    a(f"buffer_store_dword v{VTAG}, v154, {WS}, s56 offen sc1")
    a("s_mov_b64 exec, -1")


def tag_finish(a):
    a("s_waitcnt lgkmcnt(0)")
    a(f"s_mul_i32 s{TAG}, s{TAG}, 0x9e3779b1")
    a(f"s_add_u32 s{TAG}, s{TAG}, 0x7f4a7c15")
    a(f"v_mov_b32 v{VTAG}, s{TAG}")


def gen(a):
    kname = NAME + "_kernel"
    a.raw(".text")
    a.raw(f".globl {kname}")
    a.raw(".p2align 8")
    a.raw(f".type {kname},@function")
    a.label(kname)
    a("s_cmp_ge_u32 s2, 256")
    a("s_cbranch_scc1 L_END")
    if OPT["sst"]:
        a("s_memrealtime s[66:67]")
    if OPT["shuf"]:
        a("s_lshr_b32 s3, s2, 3")
        a("s_and_b32 s2, s2, 7")
        a("s_lshl_b32 s2, s2, 5")
        a("s_or_b32 s2, s2, s3")
    for _ in range(OPT["esl"]):
        a("s_sleep 64")
    a("s_load_dwordx16 s[4:19], s[0:1], 0")
    a("s_load_dwordx2 s[20:21], s[0:1], 64")
    a("v_lshrrev_b32 v1, 6, v0")
    a("v_and_b32 v0, 63, v0")
    a(f"v_readfirstlane_b32 s{W_}, v1")
    a("v_lshlrev_b32 v1, 4, v0")
    if OPT["map48"]:
        a(f"s_and_b32 s{M_}, s2, 3")
        a(f"s_lshl_b32 s{M_}, s{M_}, 2")
        a("s_bfe_u32 s3, s2, 0x20003")
        a(f"s_add_u32 s{M_}, s{M_}, s3")
        a(f"s_bfe_u32 s{TR}, s2, 0x10002")
        a(f"s_lshl_b32 s{TR}, s{TR}, 3")
        a("s_lshr_b32 s3, s2, 5")
        a(f"s_add_u32 s{TR}, s{TR}, s3")
    else:
        a(f"s_and_b32 s{M_}, s2, 1")
        a(f"s_lshl_b32 s{M_}, s{M_}, 3")
        a("s_bfe_u32 s3, s2, 0x30003")
        a(f"s_add_u32 s{M_}, s{M_}, s3")
        a(f"s_bfe_u32 s{TR}, s2, 0x20001")
        a(f"s_lshl_b32 s{TR}, s{TR}, 2")
        a("s_lshr_b32 s3, s2, 6")
        a(f"s_add_u32 s{TR}, s{TR}, s3")
    a(f"s_cmp_lt_u32 s{W_}, 8")
    a("s_cbranch_scc1 L_COMPUTE")
    gen_helper(a)
    gen_compute(a)
    a.label("L_END")
    a("s_endpgm")
    a.raw('.section .rodata,"a"')
    a.raw(".p2align 6")
    a.raw(f".amdhsa_kernel {kname}")
    a.raw("  .amdhsa_next_free_vgpr 168")
    a.raw("  .amdhsa_next_free_sgpr 100")
    a.raw("  .amdhsa_accum_offset 168")
    a.raw("  .amdhsa_group_segment_fixed_size 0")
    a.raw("  .amdhsa_kernarg_size 72")
    a.raw("  .amdhsa_user_sgpr_count 2")
    a.raw("  .amdhsa_user_sgpr_kernarg_segment_ptr 1")
    a.raw("  .amdhsa_system_sgpr_workgroup_id_x 1")
    a.raw(".end_amdhsa_kernel")


def common_late(a):
    a(f"s_and_b32 s{H_}, s2, 15")
    a(f"s_lshr_b32 s{QBK}, s2, 4")
    a(f"s_and_b32 s{MB}, s2, 7")
    a(f"s_lshl_b32 s{MB}, s{MB}, 2")
    a("s_bfe_u32 s3, s2, 0x20003")
    a(f"s_add_u32 s{MB}, s{MB}, s3")
    a(f"s_lshr_b32 s{NB}, s2, 5")
    a(f"v_mov_b32 v{VSY}, {SY:#x}")
    a(f"v_mov_b32 v{VZ}, 0")
    a(f"s_add_u32 s22, s20, {FL:#x}")
    a("s_addc_u32 s23, s21, 0")
    a(f"s_load_dword s{TAG}, s[22:23], 0")
    srd(a, 24, 20, WS_BYTES)


def gen_compute(a):
    U, G, N, TT, QBASE, KVBASE = 48, 49, 50, 51, 52, 53
    SLB = 61
    VFREE, VCNT = 163, 162
    a.label("L_COMPUTE")
    a(f"s_and_b32 s{U}, s{W_}, 3")
    a(f"s_lshr_b32 s{G}, s{W_}, 2")
    a(f"s_cmp_lg_u32 s{W_}, 0")
    a("s_cbranch_scc1 C_NOZ")
    a("v_lshlrev_b32 v2, 2, v0")
    a(f"v_add_u32 v2, {SY:#x}, v2")
    a("v_mov_b32 v3, 0")
    a("ds_write_b32 v2, v3")
    a.label("C_NOZ")
    if OPT["cpf"]:
        a(f"s_sub_u32 s3, s{W_}, 1")
        a("s_cmp_gt_u32 s3, 1")
        a("s_cbranch_scc1 C_NOCPF")
        a("s_getpc_b64 s[56:57]")
        a.label("C_PCREF")
        a("s_lshl_b32 s3, s3, 13")
        a("v_lshlrev_b32 v2, 7, v0")
        a("v_add_u32 v2, s3, v2")
        a(f"v_min_u32 v2, L_END-{NAME}_kernel, v2")
        a(f"s_sub_u32 s56, s56, C_PCREF-{NAME}_kernel")
        a("s_subb_u32 s57, s57, 0")
        a("v_mov_b32 v3, s57")
        a("v_add_co_u32 v2, vcc, s56, v2")
        a("s_nop 1")
        a("v_addc_co_u32 v3, vcc, 0, v3, vcc")
        a("global_load_dword v160, v[2:3], off")
        a.label("C_NOCPF")
    a("s_waitcnt lgkmcnt(0)")
    if ASYNC:
        a("s_barrier")
    stamp(a, 0)
    stamp(a, 1, True)
    common_late(a)
    if OPT["tlb"]:
        for wv, (ptr, nbytes, sh) in enumerate(((20, WS_BYTES, 18), (16, OUT_BYTES, 16), (8, WO_BYTES, 13),
                                                (14, WO_BYTES, 13), (4, X_BYTES, 15), (6, W_BYTES, 15))):
            L = a.new("TL")
            a(f"s_cmp_lg_u32 s{W_}, {2+wv}")
            a(f"s_cbranch_scc1 {L}")
            srd(a, 28, ptr, nbytes)
            a(f"v_lshlrev_b32 v2, {sh}, v0")
            a("buffer_load_dword v161, v2, s[28:31], 0 offen")
            a.label(L)
    if OPT["daf"]:
        a(f"s_lshl_b32 s57, s{QBK}, 2")
        a(f"s_add_u32 s57, s57, s{U}")
        a("s_lshl_b32 s57, s57, 4")
        a(f"s_add_u32 s57, s57, s{H_}")
        a("s_lshl_b32 s57, s57, 1")
        a(f"s_add_u32 s57, s57, s{G}")
        a("s_lshl_b32 s57, s57, 10")
        a(f"s_add_u32 s57, s57, {OFB:#x}")
        for r in range(4):
            a(f"v_mov_b32 v{152+r}, -1")
        a(f"buffer_store_dwordx4 v[152:155], v1, {WS}, s57 offen sc1")
    a(f"s_lshl_b32 s3, s{W_}, 2")
    a(f"s_add_u32 s3, s3, {SY+16:#x}")
    a(f"v_mov_b32 v{VFREE}, s3")
    a(f"v_mov_b32 v{VCNT}, 0")
    a("v_and_b32 v16, 31, v0")
    a(f"s_lshl_b32 s3, s{U}, 5")
    a("v_add_u32 v16, s3, v16")
    a("v_bfe_u32 v17, v16, 1, 3")
    a("v_lshrrev_b32 v18, 5, v0")
    a("v_lshlrev_b32 v16, 7, v16")
    for ks in range(4):
        a(f"v_or_b32 v19, {2*ks}, v18")
        a("v_xor_b32 v19, v19, v17")
        a(f"v_lshl_add_u32 v{2+ks}, v19, 4, v16")
    a("v_bfe_u32 v19, v0, 2, 2")
    a("v_lshl_add_u32 v19, v18, 3, v19")
    a("v_mul_u32_u24 v19, 192, v19")
    a("v_bfe_u32 v20, v0, 4, 1")
    a("v_lshl_add_u32 v19, v20, 5, v19")
    a("v_and_b32 v20, 3, v0")
    a("v_lshl_add_u32 v19, v20, 3, v19")
    a(f"s_and_b32 s3, s{TR}, 1")
    a("s_lshl_b32 s3, s3, 3")
    a(f"s_mul_i32 s54, s{G}, 112")
    a("s_add_u32 s3, s3, s54")
    a("s_add_u32 s3, s3, 16384")
    a("v_add_u32 v6, s3, v19")
    a(f"s_mov_b32 s{SLB}, {2*GS}")
    a(f"s_mul_i32 s54, s{TR}, 3")
    a(f"s_lshl_b32 s3, s{G}, 1")
    a("s_add_u32 s54, s54, s3")
    a(f"s_lshl_b32 s{TT}, s{M_}, 2")
    a(f"s_add_u32 s{TT}, s{TT}, s{U}")
    a(f"s_mov_b32 s{QBASE}, {QB:#x}")
    a(f"s_mov_b32 s{KVBASE}, {KVB:#x}")
    a(f"s_mov_b32 s{N}, 0")
    a(f"s_lshl_b32 s63, s{TR}, 7")
    a(f"s_lshl_b32 s3, s{M_}, 2")
    a("s_add_u32 s63, s63, s3")
    XF, WF, ACC, PK, TMP = [24, 72], [40, 88], [120, 136], 152, 16

    def addr():
        for r in range(5):
            a(f"v_add_u32 v{8+r}, s{SLB}, v{2+r}")
        a(f"s_add_u32 s{SLB}, s{SLB}, {GS}")
        a(f"s_cmp_eq_u32 s{SLB}, {NGS*GS}")
        a(f"s_cselect_b32 s{SLB}, 0, s{SLB}")
        a(f"v_add_u32 v{VCNT}, 1, v{VCNT}")

    def reads(buf, ns):
        for ks in range(4 if OPT["diag"] != 3 else 1):
            a(f"ds_read_b128 {vr(XF[buf]+4*ks,4)}, v{8+ks}")
            for i in range(ns):
                for t in range(2):
                    off = (16 * ks + 4 * t) * 192 + i * 56
                    a(f"ds_read_b64_tr_b16 {vr(WF[buf]+8*ks+4*i+2*t,2)}, v12 offset:{off}")

    def mfmas(types, buf):
        for ks in range(4 if OPT["diag"] != 2 else 0):
            for i, ty in enumerate(types):
                if ty == 'T':
                    mfma(a, ACC[i], WF[buf] + 8 * ks + 4 * i, XF[buf] + 4 * ks)
                else:
                    mfma(a, ACC[i], XF[buf] + 4 * ks, WF[buf] + 8 * ks + 4 * i)

    def done_signal(doff, foff):
        L = a.new("DS")
        a("s_waitcnt vmcnt(0)")
        a(f"v_mov_b32 v{TMP}, 1")
        a("s_mov_b64 exec, 1")
        a(f"ds_add_rtn_u32 v{TMP+1}, v{VSY}, v{TMP} offset:{doff}")
        a("s_waitcnt lgkmcnt(0)")
        a(f"v_readfirstlane_b32 s3, v{TMP+1}")
        a("s_mov_b64 exec, -1")
        a("s_nop 3")
        a("s_cmp_lg_u32 s3, 7")
        a(f"s_cbranch_scc1 {L}")
        a(f"s_add_u32 s3, s63, {foff:#x}")
        flag_store(a, 3)
        a.label(L)

    for r in range(32):
        a(f"v_mov_b32 v{ACC[0]+r}, 0")
    for r in range(16):
        a(f"v_mov_b32 v{XF[1]+r}, 0")
    for r in range(32):
        a(f"v_mov_b32 v{WF[1]+r}, 0")
    addr()
    tag_finish(a)
    stamp(a, 2)
    if OPT["apf"]:
        L = a.new("APF")
        a(f"s_cmp_gt_u32 s{W_}, 4")
        a(f"s_cselect_b32 s34, 99, {OPT['apf']}")
        a("s_lshr_b32 s56, s2, 3")
        a(f"s_cmp_gt_u32 s{W_}, 1")
        a(f"s_cbranch_scc1 {L}_W")
        srd(a, 28, 4, X_BYTES)
        a("s_and_b32 s35, s2, 3")
        a(f"s_mul_i32 s35, s35, {512*896}")
        a("s_mul_i32 s56, s56, 14336")
        a("s_add_u32 s35, s35, s56")
        a(f"s_lshl_b32 s56, s{W_}, 6")
        a("v_add_u32 v14, s56, v0")
        a("v_min_u32 v14, 111, v14")
        a("v_lshlrev_b32 v14, 7, v14")
        a(f"s_branch {L}")
        a.label(L + "_W")
        srd(a, 28, 6, W_BYTES)
        a(f"s_sub_u32 s35, s{W_}, 2")
        a("s_lshl_b32 s35, s35, 6")
        a("v_add_u32 v14, s35, v0")
        a("v_min_u32 v14, 167, v14")
        a("v_mul_u32_u24 v15, 5462, v14")
        a("v_lshrrev_b32 v15, 16, v15")
        a("v_mul_u32_u24 v13, 12, v15")
        a("v_sub_u32 v14, v14, v13")
        a("v_mul_u32_u24 v15, 2688, v15")
        a("v_lshl_add_u32 v14, v14, 7, v15")
        a("s_bfe_u32 s35, s2, 0x10002")
        a("s_mul_i32 s35, s35, 1344")
        a(f"s_add_u32 s35, s35, {OPT['trs']*168}")
        a("s_andn2_b32 s35, s35, 127")
        a(f"s_mul_i32 s56, s56, {14*2688}")
        a("s_add_u32 s35, s35, s56")
        a.label(L)
    if ASYNC:
        lpoll(a, 0, 4, 1, TMP, sleep=1)
    a(f"s_cmp_eq_u32 s{G}, 0")
    a("s_cbranch_scc0 C_SEL1")
    a(f"s_cmp_le_u32 s{TR}, 10")
    a("s_cbranch_scc1 C_G_TT_LOOP")
    a("s_branch C_G_NN_LOOP")
    a.label("C_SEL1")
    a(f"s_cmp_le_u32 s{TR}, 9")
    a("s_cbranch_scc1 C_G_T_LOOP")
    a("s_branch C_G_N_LOOP")

    for types in ("TT", "NN", "T", "N"):
        ns = len(types)
        L = f"C_G_{types}"

        def half(buf, k):
            if not ASYNC:
                a("s_barrier")
            reads(buf, ns)
            mfmas(types, 1 - buf)
            if ASYNC:
                a(f"ds_read_b128 {vr(TMP,4)}, v{VSY}")
                a(f"s_add_u32 s55, s{N}, {k}")
                a("s_min_u32 s55, s55, 14")
                a("s_waitcnt lgkmcnt(0)")
                a(f"ds_write_b32 v{VFREE}, v{VCNT}")
                if OPT["lst"]:
                    a(f"s_add_u32 s96, s{N}, {k-2}")
                    lstamp(a, "s96")
                a(f"v_min3_u32 v{TMP}, v{TMP}, v{TMP+1}, v{TMP+2}")
                a(f"v_min_u32 v{TMP}, v{TMP}, v{TMP+3}")
                a(f"v_cmp_gt_u32 vcc, s55, v{TMP}")
                addr()
                LL = a.new("CH")
                a(f"s_cbranch_vccz {LL}")
                lpoll(a, 0, 4, "s55", TMP, sleep=0)
                a.label(LL)
            else:
                addr()

        a.label(L + "_LOOP")
        half(0, 2)
        if OPT["apf"]:
            a(f"s_cmp_lg_u32 s{N}, s34")
            a(f"s_cbranch_scc1 {L}_NOPF")
            a("buffer_load_dword v161, v14, s[28:31], s35 offen")
            a.label(L + "_NOPF")
        a(f"s_cmp_lg_u32 s{N}, {OPT['fbn']}")
        a(f"s_cbranch_scc1 {L}_NOW")
        if ASYNC:
            done_signal(48, FB_OFF)
        else:
            a("s_waitcnt vmcnt(0)")
        a.label(L + "_NOW")
        if not ASYNC:
            a("s_waitcnt lgkmcnt(0)")
        half(1, 3)
        a(f"s_cmp_eq_u32 s{N}, 6")
        a(f"s_cbranch_scc1 {L}_EPI")
        a.label(L + "_BACK")
        if not ASYNC:
            a("s_waitcnt lgkmcnt(0)")
        a(f"s_add_u32 s{N}, s{N}, 2")
        a(f"s_cmp_lt_u32 s{N}, 14")
        a(f"s_cbranch_scc1 {L}_LOOP")
        mfmas(types, 1)
        a.label(L + "_EPI")
        a("s_nop 15")
        for i, ty in enumerate(types):
            A = ACC[i]
            a(f"s_add_u32 s56, s54, {i}")
            a("s_lshr_b32 s57, s56, 4")
            a("s_and_b32 s56, s56, 15")
            a("s_lshl_b32 s56, s56, 6")
            a(f"s_add_u32 s56, s56, s{TT}")
            if ty == 'T':
                a("s_lshl_b32 s58, s56, 11")
                a(f"s_add_u32 s58, s58, s{QBASE}")
                a("s_lshl_b32 s59, s56, 12")
                a(f"s_add_u32 s59, s59, s{KVBASE}")
                a(f"s_mov_b32 s60, {f32bits(CSCALE):#x}")
                a("s_cmp_eq_u32 s57, 0")
                a("s_cselect_b32 s58, s58, s59")
                a("s_cselect_b32 s60, s60, 1.0")
                for r in range(16):
                    a(f"v_mul_f32 v{A+r}, s60, v{A+r}")
                for j in range(8):
                    a(f"v_cvt_pk_bf16_f32 v{PK+j}, v{A+2*j}, v{A+2*j+1}")
                a("s_mov_b32 exec_lo, 0")
                a(f"v_mov_b32 v{PK+6}, 0")
                a(f"v_mov_b32 v{PK+7}, 0")
                a("s_mov_b32 exec_lo, -1")
            else:
                a("s_lshl_b32 s58, s56, 12")
                a(f"s_add_u32 s58, s58, s{KVBASE}")
                a("s_add_u32 s58, s58, 2048")
                for j in range(8):
                    a(f"v_cvt_pk_bf16_f32 v{PK+j}, v{A+2*j}, v{A+2*j+1}")
                a("s_mov_b32 exec_lo, 0xe0000000")
                a("s_mov_b32 exec_hi, 0xe0000000")
                for j in range(8):
                    a(f"v_mov_b32 v{PK+j}, 0")
                a("s_mov_b32 exec_lo, 0x10000000")
                a("s_mov_b32 exec_hi, 0x10000000")
                for j in range(8):
                    a(f"v_mov_b32 v{PK+j}, 0x3f803f80")
                a("s_mov_b64 exec, -1")
            a(f"buffer_store_dwordx4 {vr(PK,4)}, v1, {WS}, s58 offen sc1")
            a(f"buffer_store_dwordx4 {vr(PK+4,4)}, v1, {WS}, s58 offen offset:1024 sc1")
            a("s_nop 1")
        a(f"s_cmp_eq_u32 s{N}, 14")
        a("s_cbranch_scc1 C_ATT")
        stamp(a, 4)
        for i in range(ns):
            for r in range(16):
                a(f"v_mov_b32 v{ACC[i]+r}, 0")
        a(f"s_and_b32 s3, s{U}, 1")
        a("s_lshl_b32 s3, s3, 5")
        a(f"s_lshl_b32 s{TT}, s{M_}, 1")
        a(f"s_add_u32 s{TT}, s{TT}, s3")
        a(f"s_lshr_b32 s3, s{U}, 1")
        a(f"s_add_u32 s{TT}, s{TT}, s3")
        a(f"s_mov_b32 s{QBASE}, {QA:#x}")
        a(f"s_mov_b32 s{KVBASE}, {KVA:#x}")
        a(f"s_add_u32 s{TR}, s{TR}, {OPT['trs']}")
        a(f"s_and_b32 s{TR}, s{TR}, 15")
        a(f"s_mul_i32 s54, s{TR}, 3")
        a(f"s_lshl_b32 s3, s{G}, 1")
        a("s_add_u32 s54, s54, s3")
        a(f"s_cmp_le_u32 s{TR}, {10 if ns == 2 else 9}")
        a(f"s_cbranch_scc1 C_G_{'T'*ns}_BACK")
        a(f"s_branch C_G_{'N'*ns}_BACK")

    Q0, Q1, KF, VF, PA_, PB_, T0, T1 = 4, 8, 12, 20, 28, 36, 44, 45
    O, CM, SA, SB = 48, 64, 80, 96
    OFR, FU = 112, 144
    VCUR, VNXT = 2, 3
    VX1, VX2 = 152, 153
    VW0, VW1, VOA, VOB, VEX, VFOB = 156, 157, 158, 159, 160, 161
    QT, PT, KQ = 51, 52, 53
    a.label("C_ATT")
    stamp(a, 5)
    a(f"s_lshl_b32 s{QT}, s{QBK}, 2")
    a(f"s_add_u32 s{QT}, s{QT}, s{U}")
    a(f"s_lshl_b32 s3, s{U}, 11")
    a(f"s_add_u32 s3, s3, {QLDS}")
    a("v_add_u32 v46, s3, v1")
    a(f"s_lshl_b32 s3, s{G}, 14")
    a(f"s_add_u32 s3, s3, {2*SLOT}")
    a(f"v_add_u32 v{VCUR}, s3, v1")
    a(f"v_add_u32 v{VNXT}, {SLOT}, v{VCUR}")
    a(f"v_add_u32 v47, {2*SLOT}, v1")
    for r in range(16):
        a(f"v_mov_b32 v{O+r}, 0")
    for r in range(4):
        a(f"v_mov_b32 v{PB_+4+r}, 0")
        a(f"v_mov_b32 v{VF+4+r}, 0")
    a(f"s_and_b32 s{PT}, s{W_}, 1")
    a(f"s_bfe_u32 s{KQ}, s{W_}, 0x10001")
    a(f"s_lshl_b32 s3, s{U}, 12")
    a(f"s_add_u32 s3, s3, {SLOT}")
    a(f"v_add_u32 v{VX1}, s3, v1")
    a(f"s_lshl_b32 s3, s{U}, 8")
    a(f"s_add_u32 s3, s3, {SLOT+16384}")
    a(f"v_lshlrev_b32 v{VX2}, 2, v0")
    a(f"v_add_u32 v{VX2}, s3, v{VX2}")
    a("v_lshrrev_b32 v6, 5, v0")
    a("v_bfe_u32 v7, v0, 2, 2")
    a("v_lshl_add_u32 v6, v6, 2, v7")
    a("v_lshlrev_b32 v6, 7, v6")
    a("v_bfe_u32 v7, v0, 4, 1")
    a("v_lshl_add_u32 v6, v7, 5, v6")
    a("v_and_b32 v7, 3, v0")
    a("v_lshl_add_u32 v6, v7, 3, v6")
    a("v_bfe_u32 v7, v0, 3, 1")
    a(f"v_lshl_add_u32 v{VW0}, v7, 6, v6")
    a(f"s_mul_i32 s3, s{KQ}, {8*28*128}")
    a(f"s_add_u32 s3, s3, {2*SLOT}")
    a(f"s_mul_i32 s60, s{KQ}, {MREG}")
    a(f"s_cmp_eq_u32 s{G}, 1")
    a("s_cselect_b32 s3, s3, s60")
    a(f"v_add_u32 v{VW0}, s3, v{VW0}")
    a(f"v_xor_b32 v{VW1}, 64, v{VW0}")
    a(f"s_lshl_b32 s3, s{W_}, 12")
    a(f"s_add_u32 s3, s3, {SLOT}")
    a(f"v_add_u32 v{VEX}, s3, v1")
    a(f"s_xor_b32 s3, s{W_}, 2")
    a("s_lshl_b32 s3, s3, 12")
    a(f"s_add_u32 s3, s3, {SLOT}")
    a(f"v_add_u32 v{VOB}, s3, v1")
    srd(a, 36, 16, OUT_BYTES)
    a("v_and_b32 v11, 31, v0")
    a(f"s_xor_b32 s3, s{G}, 1")
    a("v_lshlrev_b32 v11, s3, v11")
    a(f"s_mul_i32 s3, s{G}, 5")
    a(f"s_lshl_b32 s3, s{PT}, s3")
    a(f"s_lshl_b32 s60, s{MB}, 6")
    a("s_add_u32 s3, s3, s60")
    a(f"v_add_u32 v{VOA}, s3, v11")
    a(f"v_mul_u32_u24 v{VOA}, 1792, v{VOA}")
    a("v_lshrrev_b32 v11, 5, v0")
    a(f"v_lshl_add_u32 v{VOA}, v11, 4, v{VOA}")
    a(f"s_lshl_b32 s60, s{NB}, 7")
    a(f"s_lshl_b32 s3, s{KQ}, 6")
    a("s_add_u32 s60, s60, s3")
    a(f"s_mul_i32 s3, s{G}, 896")
    a("s_add_u32 s60, s60, s3")
    a(f"s_lshl_b32 s3, s{MB}, 1")
    a(f"s_add_u32 s3, s3, s{PT}")
    a("s_lshl_b32 s59, s3, 15")
    a(f"s_add_u32 s59, s59, {OFB:#x}")
    a("s_lshl_b32 s3, s3, 3")
    a(f"s_add_u32 s3, s3, s{NB}")
    a("s_lshl_b32 s3, s3, 7")
    a(f"s_lshl_b32 s56, s{KQ}, 6")
    a("s_add_u32 s3, s3, s56")
    a(f"s_add_u32 s3, s3, {FOB_OFF:#x}")
    a(f"v_lshlrev_b32 v{VFOB}, 2, v0")
    a(f"v_add_u32 v{VFOB}, s3, v{VFOB}")
    a(f"s_lshl_b32 s58, s{PT}, 5")
    a(f"s_add_u32 s58, s58, s{MB}")
    a("s_lshl_b32 s58, s58, 15")
    a(f"s_add_u32 s58, s58, {OFA:#x}")
    a(f"s_cmp_eq_u32 s{G}, 1")
    a("s_cselect_b32 s58, s59, s58")
    a(f"s_lshl_b32 s3, s{KQ}, 14")
    a("s_add_u32 s58, s58, s3")
    a("s_add_u32 s59, s58, 4096")
    a("s_add_u32 s61, s58, 8192")
    a("s_add_u32 s63, s58, 12288")
    a(f"s_lshl_b32 s57, s{QT}, 4")
    a(f"s_add_u32 s57, s57, s{H_}")
    a("s_lshl_b32 s57, s57, 1")
    a(f"s_add_u32 s57, s57, s{G}")
    a("s_and_b32 s56, s57, 31")
    a("s_lshl_b32 s56, s56, 2")
    a(f"s_lshl_b32 s3, s{QT}, 10")
    a("s_add_u32 s56, s56, s3")
    a(f"s_add_u32 s56, s56, {FOB_OFF:#x}")
    a("v_lshlrev_b32 v154, 7, v0")
    a("s_lshl_b32 s57, s57, 10")
    a(f"s_add_u32 s57, s57, {OFB:#x}")
    a("s_barrier")
    stamp(a, 6)
    a(f"ds_read_b128 {vr(Q0,4)}, v46")
    a(f"ds_read_b128 {vr(Q1,4)}, v46 offset:1024")
    a(f"ds_read_b128 {vr(KF,4)}, v47")
    a(f"ds_read_b128 {vr(KF+4,4)}, v47 offset:1024")
    a("s_waitcnt lgkmcnt(0)")
    mfma(a, SB, KF, Q0, 0)
    mfma(a, SB, KF + 4, Q1)
    a(f"ds_read_b128 {vr(KF,4)}, v{VCUR}")
    a(f"ds_read_b128 {vr(KF+4,4)}, v{VCUR} offset:1024")
    a("s_nop 15")
    max16(a, T0, SB)
    xhalf_max(a, T0, T1)
    a(f"v_add_f32 v{T0}, {f32bits(M_OFF):#x}, v{T0}")
    for r in range(16):
        a(f"v_sub_f32 v{CM+r}, 0, v{T0}")
    a("s_waitcnt lgkmcnt(0)")
    a("s_nop 0")
    mfma(a, SA, KF, Q0, CM)
    mfma(a, SA, KF + 4, Q1)
    a(f"ds_read_b128 {vr(KF,4)}, v{VCUR} offset:4096")
    a(f"ds_read_b128 {vr(KF+4,4)}, v{VCUR} offset:5120")
    a(f"ds_read_b128 {vr(VF,4)}, v{VCUR} offset:2048")
    a("s_mov_b32 s54, 0")
    a("s_nop 15")

    OREG = [OFR + 4 * i for i in range(8)] + [16 + 4 * i for i in range(8)]

    def o_loads(lo, hi):
        for i in range(lo, hi):
            so = (58, 59, 61, 63)[i // 4]
            a(f"buffer_load_dwordx4 {vr(OREG[i],4)}, v1, {WS}, s{so} offen offset:{(i%4)*1024} sc1")

    a(f"s_cmp_ge_u32 s2, 224")
    a("s_cselect_b32 s55, 9, 7")
    a(f"s_cmp_eq_u32 s{G}, 1")
    a("s_cselect_b32 s55, 9, s55")

    def step(j, sc, sn):
        PA = PA_ if j % 2 == 0 else PB_
        PB = PB_ if j % 2 == 0 else PA_
        VB = VF + 4
        if j == 2:
            a("s_waitcnt vmcnt(0)")
            if OPT["lst"]:
                a("s_memrealtime s[94:95]")
                a("s_lshl_b32 m0, s54, 1")
                a("s_waitcnt lgkmcnt(0)")
                a("v_writelane_b32 v167, s94, m0")
            a("s_barrier")
            if OPT["lst"]:
                a("s_memrealtime s[94:95]")
                a("s_add_u32 m0, m0, 1")
                a("s_waitcnt lgkmcnt(0)")
                a("v_writelane_b32 v167, s94, m0")
            a("s_cmp_eq_u32 s54, s55")
            a("s_cbranch_scc1 C_OA1")
            a.label("C_OA1_BACK")
        a("s_waitcnt lgkmcnt(1)")
        mfma(a, sn, KF, Q0, CM)
        for r in range(0, 4):
            a(f"v_exp_f32 v{sc+r}, v{sc+r}")
        mfma(a, sn, KF + 4, Q1)
        kb, ko = (VCUR, (j + 2) * 4096) if j + 2 < 4 else (VNXT, (j + 2 - 4) * 4096)
        a(f"ds_read_b128 {vr(KF,4)}, v{kb} offset:{ko}")
        a(f"ds_read_b128 {vr(KF+4,4)}, v{kb} offset:{ko+1024}" if OPT["diag"] != 1 else "ds_read_b32 v150, v164")
        for r in range(4, 8):
            a(f"v_exp_f32 v{sc+r}, v{sc+r}")
        a(f"v_cvt_pk_bf16_f32 v{PA+0}, v{sc+0}, v{sc+1}")
        a(f"v_cvt_pk_bf16_f32 v{PA+1}, v{sc+2}, v{sc+3}")
        mfma(a, O, VB, PB + 4)
        a(f"ds_read_b128 {vr(VB,4)}, v{VCUR} offset:{j*4096+3072}" if OPT["diag"] != 1 else "ds_read_b32 v151, v164")
        for r in range(8, 12):
            if not OPT["noexp"]:
                a(f"v_exp_f32 v{sc+r}, v{sc+r}")
        a(f"v_cvt_pk_bf16_f32 v{PA+2}, v{sc+4}, v{sc+5}")
        a(f"v_cvt_pk_bf16_f32 v{PA+3}, v{sc+6}, v{sc+7}")
        for r in range(12, 14):
            a(f"v_exp_f32 v{sc+r}, v{sc+r}")
        a("s_waitcnt lgkmcnt(3)")
        mfma(a, O, VF, PA)
        vb, vo = (VCUR, (j + 1) * 4096 + 2048) if j + 1 < 4 else (VNXT, 2048)
        a(f"ds_read_b128 {vr(VF,4)}, v{vb} offset:{vo}")
        for r in range(14, 16):
            a(f"v_exp_f32 v{sc+r}, v{sc+r}")
        for q in range(4, 8):
            a(f"v_cvt_pk_bf16_f32 v{PA+q}, v{sc+2*q}, v{sc+2*q+1}")

    a.label("C_LOOP")
    step(0, SA, SB)
    step(1, SB, SA)
    step(2, SA, SB)
    step(3, SB, SA)
    a(f"v_mov_b32 v{VCUR}, v{VNXT}")
    a(f"v_add_u32 v{VNXT}, {SLOT}, v{VNXT}")
    a(f"v_and_b32 v{VNXT}, {4*SLOT-1:#x}, v{VNXT}")
    a("s_add_u32 s54, s54, 1")
    a("s_cmp_lt_u32 s54, 8")
    a("s_cbranch_scc1 C_LOOP")
    a("s_waitcnt lgkmcnt(0)")
    mfma(a, O, VF + 4, PB_ + 4)
    stamp(a, 7)
    a("s_barrier")
    a("s_nop 2")
    a("s_nop 13")
    a(f"s_cmp_eq_u32 s{G}, 1")
    a("s_cbranch_scc1 C_G1")
    a(f"ds_write_b128 v{VX1}, {vr(O+8,4)}")
    a(f"ds_write_b128 v{VX1}, {vr(O+12,4)} offset:1024")
    a("s_waitcnt lgkmcnt(0)")
    a("s_barrier")
    a(f"ds_read_b128 {vr(SA,4)}, v{VX1} offset:2048")
    a(f"ds_read_b128 {vr(SA+4,4)}, v{VX1} offset:3072")
    a(f"ds_read_b32 v{T0}, v{VX2}")
    a("s_waitcnt lgkmcnt(0)")
    a(f"v_add_f32 v{T0}, v{T0}, v{O+12}")
    for r in range(8):
        a(f"v_add_f32 v{SA+r}, v{SA+r}, v{O+r}")
    a("s_branch C_FIN")
    a.label("C_G1")
    a(f"ds_write_b128 v{VX1}, {vr(O,4)} offset:2048")
    a(f"ds_write_b128 v{VX1}, {vr(O+4,4)} offset:3072")
    a(f"ds_write_b32 v{VX2}, v{O+12}")
    a("s_waitcnt lgkmcnt(0)")
    a("s_barrier")
    a(f"ds_read_b128 {vr(SA,4)}, v{VX1}")
    a(f"ds_read_b128 {vr(SA+4,4)}, v{VX1} offset:1024")
    a("s_waitcnt lgkmcnt(0)")
    for r in range(8):
        a(f"v_add_f32 v{SA+r}, v{SA+r}, v{O+8+r}")
    a(f"v_mov_b32 v{T0}, v{SA+4}")
    a.label("C_FIN")
    a(f"v_mov_b32 v{T1}, v{T0}")
    a("s_nop 1")
    a(f"v_permlane32_swap_b32 v{T0}, v{T1}")
    a("s_nop 1")
    a(f"v_mul_f32 v{T0}, 0, v{T1}")
    for r in range(8):
        a(f"v_fma_f32 v{T0}, v{SA+r}, 0, v{T0}")
    a(f"v_cmp_u_f32 vcc, v{T0}, v{T0}")
    a("s_nop 4")
    a("s_cbranch_vccnz C_FALLBACK")
    a.label("C_STORE")
    a(f"v_rcp_f32 v{T1}, v{T1}")
    a("s_nop 0")
    for r in range(8):
        a(f"v_mul_f32 v{SA+r}, v{SA+r}, v{T1}")
    for j in range(4):
        a(f"v_cvt_pk_bf16_f32 v{4+j}, v{SA+2*j}, v{SA+2*j+1}")
    a(f"s_cmp_eq_u32 s{G}, 0")
    a("s_cbranch_scc1 C_NOPAD")
    a("s_mov_b32 exec_lo, 0")
    a("v_mov_b32 v6, 0")
    a("v_mov_b32 v7, 0")
    a("s_mov_b32 exec_lo, -1")
    a.label("C_NOPAD")
    a(f"buffer_store_dwordx4 v[4:7], v1, {WS}, s57 offen sc1")
    a("s_barrier")
    stamp(a, 8)
    WOF, PACC = 48, 80
    if OPT["daf"]:
        a("s_cmp_ge_u32 s2, 224")
        a("s_cbranch_scc1 C_DONE")
    else:
        a("s_cmp_ge_u32 s2, 224")
        a("s_cbranch_scc0 C_PROJ")
        a("s_waitcnt vmcnt(0)")
        fob_store(a)
        a("s_branch C_DONE")
        a.label("C_PROJ")
    OSC = {0: "", 1: " sc1", 2: " nt"}[OPT["outsc"]]

    def wo_read(s):
        hd, f = s // 2, s % 2
        for nt, b in enumerate((VW0, VW1)):
            for t in range(2):
                off = (28 * hd + 16 * f + 8 * t) * 128
                a(f"ds_read_b64_tr_b16 {vr(WOF+8*(s%4)+4*nt+2*t,2)}, v{b} offset:{off}")

    if OPT["daf"]:
        CHK = 146
        a(f"v_lshlrev_b32 v{VFOB}, 10, v0")
        a(f"v_add_u32 v{VFOB}, 1020, v{VFOB}")
        a("s_mov_b32 s55, 64")
        a(f"s_cmp_eq_u32 s{G}, 1")
        a("s_cbranch_scc1 C_PB")
        o_loads(8, 16)
        for s_ in range(4):
            wo_read(s_)
        a("s_branch C_PJ")
        a.label("C_PB")
        PEND, TRY = 52, 54
        if OPT["grp"]:
            a(f"s_mov_b32 s{PEND}, 15")
            a(f"s_mov_b32 s62, {POLL_MAX}")
            a.label("C_RND")
            a("s_sub_u32 s62, s62, 1")
            a("s_cmp_eq_u32 s62, 0")
            a("s_cbranch_scc1 C_POK")
            a(f"s_mov_b32 s{TRY}, s{PEND}")
            a(f"s_sub_u32 s3, s{PEND}, 1")
            a(f"s_and_b32 s3, s3, s{PEND}")
            a("s_cbranch_scc0 C_TRY")
            a("s_mov_b64 exec, 0xffff")
            a(f"buffer_load_dword v{FU}, v{VFOB}, {WS}, s58 offen sc1")
            a("s_waitcnt vmcnt(0)")
            a(f"v_cmp_eq_u32 vcc, -1, v{FU}")
            a("s_mov_b64 exec, -1")
            a(f"s_mov_b32 s{TRY}, 0")
            a("s_nop 3")
            for g_ in range(4):
                a(f"s_bfe_u32 s3, vcc_lo, {(4 << 16) | (4 * g_):#x}")
                a(f"s_cselect_b32 s3, 0, {1 << g_}")
                a(f"s_or_b32 s{TRY}, s{TRY}, s3")
            a(f"s_and_b32 s{TRY}, s{TRY}, s{PEND}")
            a("s_cbranch_scc1 C_GO")
            a(f"s_sleep {OPT['fsl']}")
            a("s_branch C_RND")
            a.label("C_GO")
            a(f"s_cmp_eq_u32 s{TRY}, 15")
            a("s_cbranch_scc1 C_FAST")
            a(f"s_cmp_lg_u32 s{PEND}, 15")
            a("s_cbranch_scc1 C_TRY")
            for r in range(32):
                a(f"v_mov_b32 v{PACC+r}, 0")
            a.label("C_TRY")
            for g_ in range(4):
                a(f"s_bitcmp1_b32 s{TRY}, {g_}")
                a(f"s_cbranch_scc0 C_NL{g_}")
                o_loads(4 * g_, 4 * g_ + 4)
                a.label(f"C_NL{g_}")
            for g_ in range(4):
                a(f"s_bitcmp1_b32 s{TRY}, {g_}")
                a(f"s_cbranch_scc0 C_NB{g_}")
                for s_ in range(4 * g_, 4 * g_ + 4):
                    wo_read(s_)
                a("s_waitcnt vmcnt(0)")
                o0 = OREG[4 * g_]
                a(f"v_max3_u32 v{CHK}, v{o0}, v{o0+1}, v{o0+2}")
                for k in range(3, 15, 2):
                    a(f"v_max3_u32 v{CHK}, v{CHK}, v{o0+k}, v{o0+k+1}")
                a(f"v_max_u32 v{CHK}, v{CHK}, v{o0+15}")
                a(f"v_cmp_eq_u32 vcc, -1, v{CHK}")
                a("s_waitcnt lgkmcnt(0)")
                a("s_nop 3")
                a(f"s_cbranch_vccnz C_NB{g_}")
                for s_ in range(4 * g_, 4 * g_ + 4):
                    for nt in range(2):
                        mfma(a, PACC + 16 * nt, WOF + 8 * (s_ % 4) + 4 * nt, OREG[s_])
                a(f"s_bitset0_b32 s{PEND}, {g_}")
                a.label(f"C_NB{g_}")
            a(f"s_cmp_lg_u32 s{PEND}, 0")
            a("s_cbranch_scc1 C_RND")
            a("s_branch C_POK")
            a.label("C_FAST")
            for s_ in range(4):
                wo_read(s_)
        else:
            for s_ in range(4):
                wo_read(s_)
            stamp(a, 9)
            a("s_mov_b64 exec, 0xffff")
            a(f"s_mov_b32 s62, {POLL_MAX}")
            a.label("C_DP")
            a(f"buffer_load_dword v{FU}, v{VFOB}, {WS}, s58 offen sc1")
            a("s_waitcnt vmcnt(0)")
            a(f"v_cmp_eq_u32 vcc, -1, v{FU}")
            a("s_sub_u32 s62, s62, 1")
            a("s_nop 3")
            a("s_cbranch_vccz C_DP_OK")
            a(f"s_sleep {OPT['fsl']}")
            a("s_cmp_lg_u32 s62, 0")
            a("s_cbranch_scc1 C_DP")
            a.label("C_DP_OK")
            a("s_mov_b64 exec, -1")
        stamp(a, 10)
        o_loads(0, 16)
        a.label("C_PJ")
        a(f"v_mov_b32 v{CHK}, 0")
        for s_ in range(16):
            lg = min(12, 4 * (15 - s_)) if s_ < 13 else 4 * (15 - s_)
            a(f"s_waitcnt vmcnt({15-s_}) lgkmcnt({lg})")
            for nt in range(2):
                mfma(a, PACC + 16 * nt, WOF + 8 * (s_ % 4) + 4 * nt, OREG[s_], 0 if s_ == 0 else None)
            if s_ + 4 < 16:
                wo_read(s_ + 4)
            a(f"v_max3_u32 v{CHK}, v{CHK}, v{OREG[s_]}, v{OREG[s_]+1}")
            a(f"v_max3_u32 v{CHK}, v{CHK}, v{OREG[s_]+2}, v{OREG[s_]+3}")
        a(f"v_cmp_eq_u32 vcc, -1, v{CHK}")
        a("s_sub_u32 s55, s55, 1")
        a(f"s_mul_i32 s3, s55, s{G}")
        a("s_nop 2")
        a("s_cbranch_vccz C_POK")
        a("s_cmp_lg_u32 s3, 0")
        a("s_cbranch_scc1 C_PB")
        a.label("C_POK")
    else:
        a(f"s_cmp_eq_u32 s{G}, 1")
        a("s_cbranch_scc1 C_PB")
        for s_ in range(4):
            wo_read(s_)
        a("s_waitcnt vmcnt(0)")
        fob_store(a)
        o_loads(8, 16)
        a("s_branch C_PJ")
        a.label("C_PB")
        for s_ in range(4):
            wo_read(s_)
        a("s_waitcnt vmcnt(0)")
        fob_store(a)
        stamp(a, 9)
        if OPT["pp"]:
            a("s_mov_b64 exec, 0xffff")
            a(f"s_mov_b32 s62, {POLL_MAX}")
            a(f"buffer_load_dword v{FU}, v{VFOB}, {WS}, 0 offen sc1")
            a.label("C_PP")
            for r0, r1 in ((FU, FU + 1), (FU + 1, FU)):
                a("s_sleep 2")
                a(f"buffer_load_dword v{r1}, v{VFOB}, {WS}, 0 offen sc1")
                a("s_waitcnt vmcnt(1)")
                a(f"v_cmp_ne_u32 vcc, s{TAG}, v{r0}")
                a("s_sub_u32 s62, s62, 1")
                a("s_nop 3")
                a("s_cbranch_vccz C_PP_OK")
            a("s_cmp_gt_u32 s62, 1")
            a("s_cbranch_scc1 C_PP")
            a.label("C_PP_OK")
            a("s_mov_b64 exec, -1")
        else:
            gpoll(a, VFOB, 0xffff, 0, FU, sleep=OPT['fsl'])
        stamp(a, 10)
        o_loads(0, 16)
        a.label("C_PJ")
        for s_ in range(16):
            lg = min(12, 4 * (15 - s_)) if s_ < 13 else 4 * (15 - s_)
            a(f"s_waitcnt vmcnt({15-s_}) lgkmcnt({lg})")
            for nt in range(2):
                mfma(a, PACC + 16 * nt, WOF + 8 * (s_ % 4) + 4 * nt, OREG[s_], 0 if s_ == 0 else None)
            if s_ + 4 < 16:
                wo_read(s_ + 4)
    stamp(a, 11)
    a("s_nop 15")
    a(f"s_cmp_eq_u32 s{KQ}, 0")
    a("s_cbranch_scc1 C_KH0")
    for q in range(4):
        a(f"ds_write_b128 v{VEX}, {vr(PACC+4*q,4)} offset:{q*1024}")
    for r in range(16):
        a(f"v_mov_b32 v{PACC+r}, v{PACC+16+r}")
    a("s_branch C_KHJ")
    a.label("C_KH0")
    for q in range(4):
        a(f"ds_write_b128 v{VEX}, {vr(PACC+16+4*q,4)} offset:{q*1024}")
    a.label("C_KHJ")
    a("s_waitcnt lgkmcnt(0)")
    if OPT["dsl2"]:
        a(f"s_sleep {OPT['dsl2']}")
    a("s_barrier")
    for q in range(4):
        a(f"ds_read_b128 {vr(PACC+16+4*q,4)}, v{VOB} offset:{q*1024}")
    for q in range(4):
        a(f"s_waitcnt lgkmcnt({3-q})")
        for r in range(4 * q, 4 * q + 4):
            a(f"v_add_f32 v{PACC+r}, v{PACC+r}, v{PACC+16+r}")
    for j in range(8):
        a(f"v_cvt_pk_bf16_f32 v{8+j}, v{PACC+2*j}, v{PACC+2*j+1}")
    a("s_nop 1")
    a("v_permlane32_swap_b32 v8, v10")
    a("v_permlane32_swap_b32 v9, v11")
    a("v_permlane32_swap_b32 v12, v14")
    a("v_permlane32_swap_b32 v13, v15")
    a("s_nop 1")
    a(f"buffer_store_dwordx4 v[8:11], v{VOA}, s[36:39], s60 offen{OSC}")
    a(f"buffer_store_dwordx4 v[12:15], v{VOA}, s[36:39], s60 offen offset:32{OSC}")
    a(f"s_or_b32 s3, s2, s{W_}")
    a("s_cmp_lg_u32 s3, 0")
    a("s_cbranch_scc1 C_DONE")
    a(f"s_mov_b32 s3, {FL:#x}")
    flag_store(a, 3)
    a.label("C_DONE")
    stamp(a, 12)
    if STAMP:
        a("s_waitcnt vmcnt(0)")
    stamp(a, 13)
    stamp(a, 14, True)
    stamp_flush(a, 15)
    a("s_endpgm")

    a.label("C_OA1")
    o_loads(0, 8)
    a("s_branch C_OA1_BACK")

    a.label("C_FALLBACK")
    a(f"s_lshl_b32 s62, s{H_}, 18")
    a(f"s_add_u32 s62, s62, {KVB:#x}")
    a(f"s_mov_b32 s3, {NEG_BIG:#x}")
    a(f"v_mov_b32 v{T0}, s3")
    a("s_mov_b32 s55, 0")
    a("s_mov_b32 s3, s62")
    a.label("C_FB1")
    a(f"buffer_load_dwordx4 {vr(KF,4)}, v1, {WS}, s3 offen sc1")
    a(f"buffer_load_dwordx4 {vr(KF+4,4)}, v1, {WS}, s3 offen offset:1024 sc1")
    a("s_waitcnt vmcnt(0)")
    mfma(a, SB, KF, Q0, 0)
    mfma(a, SB, KF + 4, Q1)
    a("s_nop 15")
    a("s_nop 3")
    max16(a, T1, SB, extra=[T0])
    a(f"v_mov_b32 v{T0}, v{T1}")
    a("s_add_u32 s3, s3, 4096")
    a("s_add_u32 s55, s55, 1")
    a("s_cmp_lt_u32 s55, 64")
    a("s_cbranch_scc1 C_FB1")
    xhalf_max(a, T0, T1)
    for r in range(16):
        a(f"v_sub_f32 v{CM+r}, 0, v{T0}")
    for r in range(16):
        a(f"v_mov_b32 v{O+r}, 0")
    a("s_mov_b32 s55, 0")
    a("s_mov_b32 s3, s62")
    a.label("C_FB2")
    a(f"buffer_load_dwordx4 {vr(KF,4)}, v1, {WS}, s3 offen sc1")
    a(f"buffer_load_dwordx4 {vr(KF+4,4)}, v1, {WS}, s3 offen offset:1024 sc1")
    a(f"buffer_load_dwordx4 {vr(VF,4)}, v1, {WS}, s3 offen offset:2048 sc1")
    a(f"buffer_load_dwordx4 {vr(VF+4,4)}, v1, {WS}, s3 offen offset:3072 sc1")
    a("s_waitcnt vmcnt(0)")
    mfma(a, SB, KF, Q0, CM)
    mfma(a, SB, KF + 4, Q1)
    a("s_nop 15")
    a("s_nop 3")
    for r in range(16):
        a(f"v_exp_f32 v{SB+r}, v{SB+r}")
    a("s_nop 0")
    for q in range(8):
        a(f"v_cvt_pk_bf16_f32 v{PA_+q}, v{SB+2*q}, v{SB+2*q+1}")
    a("s_nop 1")
    mfma(a, O, VF, PA_)
    mfma(a, O, VF + 4, PA_ + 4)
    a("s_add_u32 s3, s3, 4096")
    a("s_add_u32 s55, s55, 1")
    a("s_cmp_lt_u32 s55, 64")
    a("s_cbranch_scc1 C_FB2")
    a("s_nop 15")
    a("s_nop 3")
    a(f"v_mov_b32 v{T0}, v{O+12}")
    a(f"v_mov_b32 v{T1}, v{O+12}")
    a("s_nop 1")
    a(f"v_permlane32_swap_b32 v{T0}, v{T1}")
    a(f"s_cmp_eq_u32 s{G}, 0")
    a("s_cbranch_scc1 C_FB3")
    for r in range(8):
        a(f"v_mov_b32 v{O+r}, v{O+8+r}")
    a.label("C_FB3")
    for r in range(8):
        a(f"v_mov_b32 v{SA+r}, v{O+r}")
    a("s_branch C_STORE")


def gen_helper(a):
    E, CC, XS, WSO, LX, LW, SL, N = 48, 49, 50, 51, 52, 53, 54, 55
    VFULL, VCNT, TMP = 163, 162, 144
    a("s_setprio 3")
    a(f"s_sub_u32 s{E}, s{W_}, 8")
    a("v_lshrrev_b32 v2, 3, v0")
    a("v_and_b32 v3, 7, v0")
    a("v_lshrrev_b32 v12, 4, v0")
    for i in range(4):
        a(f"v_add_u32 v13, {4*i}, v12")
        a("v_and_b32 v13, 7, v13")
        a("v_xor_b32 v13, v13, v3")
        a(f"v_add_u32 v14, {8*i}, v2")
        a(f"v_mul_u32_u24 v{8+i}, 896, v14")
        a(f"v_lshl_add_u32 v{4+i}, v13, 4, v{8+i}")
    a("s_mov_b32 s3, 5462")
    for i in range(3):
        a(f"v_add_u32 v15, {64*i}, v0")
        a("v_mul_lo_u32 v16, v15, s3")
        a("v_lshrrev_b32 v16, 16, v16")
        a("v_mul_u32_u24 v17, 12, v16")
        a("v_sub_u32 v15, v15, v17")
        a("v_min_u32 v15, 10, v15")
        a("v_mul_u32_u24 v16, 2688, v16")
        a(f"v_lshl_add_u32 v{12+i}, v15, 4, v16")
    a(f"s_lshl_b32 s{XS}, s{M_}, 2")
    a(f"s_add_u32 s{XS}, s{XS}, s{E}")
    a(f"s_mul_i32 s{XS}, s{XS}, {32*896}")
    a(f"s_mul_i32 s{WSO}, s{TR}, 168")
    a(f"s_andn2_b32 s{WSO}, s{WSO}, 15")
    a(f"s_mul_i32 s3, s{E}, {16*2688}")
    a(f"s_add_u32 s{WSO}, s{WSO}, s3")
    a(f"s_lshl_b32 s{LX}, s{E}, 12")
    a(f"s_mul_i32 s{LW}, s{E}, 3072")
    a(f"s_add_u32 s{LW}, s{LW}, 16384")
    a(f"s_lshl_b32 s{CC}, s{TR}, 1")
    a(f"s_add_u32 s{CC}, s{CC}, s{M_}")
    a(f"s_mul_i32 s3, s{CC}, 37")
    a("s_lshr_b32 s3, s3, 8")
    a("s_mul_i32 s3, s3, 7")
    a(f"s_sub_u32 s{CC}, s{CC}, s3")
    a(f"s_mov_b32 s{SL}, {2*GS}")
    a(f"s_mov_b32 s{N}, 0")
    a("s_waitcnt lgkmcnt(0)")
    stamp(a, 0)
    stamp(a, 1, True)
    srd(a, 28, 10, X_BYTES)
    srd(a, 32, 12, W_BYTES)

    def gemm_issue():
        a(f"s_lshl_b32 s56, s{CC}, 7")
        a(f"s_add_u32 s56, s56, s{XS}")
        a(f"s_mul_i32 s57, s{CC}, {64*2688}")
        a(f"s_add_u32 s57, s57, s{WSO}")
        a(f"s_add_u32 s58, s{SL}, s{LX}")
        a(f"s_add_u32 s59, s{SL}, s{LW}")
        for i in range(4):
            a(f"s_add_u32 m0, s58, {i*1024}")
            a("s_nop 0")
            a(f"buffer_load_dwordx4 v{4+i}, s[28:31], s56 offen lds")
        for i in range(3):
            a(f"s_add_u32 m0, s59, {i*1024}")
            a("s_nop 0")
            a(f"buffer_load_dwordx4 v{12+i}, s[32:35], s57 offen lds")
        a(f"s_add_u32 s{CC}, s{CC}, 1")
        a(f"s_cmp_eq_u32 s{CC}, 7")
        a(f"s_cselect_b32 s{CC}, 0, s{CC}")
        a(f"s_add_u32 s{SL}, s{SL}, {GS}")
        a(f"s_cmp_eq_u32 s{SL}, {NGS*GS}")
        a(f"s_cselect_b32 s{SL}, 0, s{SL}")

    def publish(val):
        a(f"v_mov_b32 v{VCNT}, {val}")
        a(f"ds_write_b32 v{VFULL}, v{VCNT}")

    def flag_addr(dst, shead, base):
        a(f"v_lshrrev_b32 v{dst}, 4, v0")
        a(f"v_lshlrev_b32 v{dst}, 4, v{dst}")
        a(f"v_add_u32 v{dst}, s{shead}, v{dst}")
        a(f"v_mul_u32_u24 v{dst}, 171, v{dst}")
        a(f"v_lshrrev_b32 v{dst}, 9, v{dst}")
        a(f"v_min_u32 v{dst}, 15, v{dst}")
        a(f"v_lshlrev_b32 v{dst}, 7, v{dst}")
        a("v_and_b32 v19, 15, v0")
        a(f"v_lshl_add_u32 v{dst}, v19, 2, v{dst}")
        a(f"v_add_u32 v{dst}, {base:#x}, v{dst}")

    def shared_gpoll(k, vaddr, mlo, mhi, sleep=2):
        L = a.new("SG")
        a(f"s_cmp_lg_u32 s{E}, 0")
        a(f"s_cbranch_scc1 {L}")
        gpoll(a, vaddr, mlo, mhi, 19, sleep=sleep)
        a(f"v_mov_b32 v{VCNT}, 1")
        a(f"ds_write_b32 v{VSY}, v{VCNT} offset:{96+4*k}")
        a(f"s_branch {L}_J")
        a.label(L)
        lpoll(a, 96 + 4 * k, 1, 1, TMP, sleep=sleep)
        a.label(L + "_J")

    def switch_a():
        srd(a, 28, 4, X_BYTES)
        srd(a, 32, 6, W_BYTES)
        for i in range(4):
            a(f"v_add_u32 v{4+i}, v{4+i}, v{8+i}")
        a(f"s_lshl_b32 s{XS}, s{M_}, 7")
        a(f"s_lshr_b32 s3, s{E}, 1")
        a("s_lshl_b32 s3, s3, 6")
        a(f"s_add_u32 s{XS}, s{XS}, s3")
        a(f"s_and_b32 s3, s{E}, 1")
        a(f"s_add_u32 s{XS}, s{XS}, s3")
        a(f"s_mul_i32 s{XS}, s{XS}, 896")
        a(f"s_add_u32 s{TR}, s{TR}, {OPT['trs']}")
        a(f"s_and_b32 s{TR}, s{TR}, 15")
        a(f"s_mul_i32 s{WSO}, s{TR}, 168")
        a(f"s_andn2_b32 s{WSO}, s{WSO}, 15")
        a(f"s_mul_i32 s3, s{E}, {16*2688}")
        a(f"s_add_u32 s{WSO}, s{WSO}, s3")

    gemm_issue()
    if OPT["sst"]:
        a("s_memrealtime s[94:95]")
        a("s_waitcnt lgkmcnt(0)")
        a("v_writelane_b32 v167, s94, 0")
    common_late(a)
    a(f"s_lshl_b32 s3, s{E}, 2")
    a(f"s_add_u32 s3, s3, {SY:#x}")
    a(f"v_mov_b32 v{VFULL}, s3")
    flag_addr(18, H_, FB_OFF)
    a(f"s_lshl_b32 s61, s{TR}, 7")
    a(f"s_lshl_b32 s3, s{M_}, 2")
    a("s_add_u32 s61, s61, s3")
    a(f"s_add_u32 s61, s61, {FB_OFF:#x}")
    a(f"s_mov_b32 s{N}, 1")
    if ASYNC:
        a("s_barrier")
    a.label("H_GL")
    if ASYNC:
        a(f"s_cmp_lt_u32 s{N}, {NGS}")
        a("s_cbranch_scc1 H_NOFREE")
        a(f"s_sub_u32 s60, s{N}, {NGS-1}")
        lpoll(a, 16, 8, "s60", TMP, sleep=0)
        a.label("H_NOFREE")
    else:
        if OPT["b4"]:
            a(f"s_cmp_lt_u32 s{N}, 2")
            a("s_cbranch_scc1 H_NOBAR")
            a(f"s_cmp_eq_u32 s{N}, 2")
            a("s_cbranch_scc1 H_W7")
            a(f"s_cmp_lt_u32 s{N}, 5")
            a("s_cbranch_scc1 H_NOBAR")
            a("s_waitcnt vmcnt(21)")
        else:
            a(f"s_cmp_lt_u32 s{N}, 2")
            a("s_cbranch_scc1 H_NOBAR")
            a(f"s_cmp_eq_u32 s{N}, 3")
            a("s_cbranch_scc1 H_NOBAR")
            a(f"s_cmp_eq_u32 s{N}, 2")
            a("s_cbranch_scc1 H_W7")
            a("s_waitcnt vmcnt(14)")
        a("s_branch H_W")
        a.label("H_W7")
        a("s_waitcnt vmcnt(7)")
        a.label("H_W")
        if OPT["sst"]:
            a("s_memrealtime s[94:95]")
            a(f"s_mov_b32 m0, s{N}")
            a("s_waitcnt lgkmcnt(0)")
            a("v_writelane_b32 v167, s94, m0")
        a("s_barrier")
        a(f"s_cmp_lg_u32 s{N}, {OPT['fbn']+4+OPT['b4']}")
        a("s_cbranch_scc1 H_NOBAR")
        a(f"s_cmp_lg_u32 s{E}, 0")
        a("s_cbranch_scc1 H_NOBAR")
        flag_store(a, 61)
        a.label("H_NOBAR")
    if OPT["efb"]:
        a(f"s_lshl_b32 s3, s{N}, 2")
        a(f"s_or_b32 s3, s3, s{E}")
        a("s_cmp_lg_u32 s3, 52")
        a("s_cbranch_scc1 H_NOEFB")
        a("s_mov_b32 exec_hi, 0xffff")
        a(f"buffer_load_dword v19, v18, {WS}, 0 offen sc1")
        a("s_mov_b32 exec_hi, -1")
        a.label("H_NOEFB")
    a(f"s_cmp_lg_u32 s{N}, 7")
    a("s_cbranch_scc1 H_NOSW")
    switch_a()
    a.label("H_NOSW")
    gemm_issue()
    if ASYNC:
        a(f"s_cmp_lt_u32 s{N}, 2")
        a("s_cbranch_scc1 H_NOPUB")
        a("s_waitcnt vmcnt(14)")
        a(f"s_sub_u32 s60, s{N}, 1")
        publish("s60")
        lstamp(a, "s60")
        a.label("H_NOPUB")
    else:
        a(f"s_cmp_lg_u32 s{N}, 3")
        a("s_cbranch_scc1 H_NOT3")
        tag_finish(a)
        a.label("H_NOT3")
    a(f"s_add_u32 s{N}, s{N}, 1")
    a(f"s_cmp_lt_u32 s{N}, 14")
    a("s_cbranch_scc1 H_GL")
    if ASYNC:
        a("s_waitcnt vmcnt(7)")
        publish(13)
        tag_finish(a)
        a("s_waitcnt vmcnt(0)")
        publish(14)
    else:
        if OPT["b4"]:
            a("s_waitcnt vmcnt(21)")
            a("s_barrier")
        a("s_waitcnt vmcnt(14)")
        a("s_barrier")
    KVS = 50
    a(f"s_lshl_b32 s{KVS}, s{H_}, 18")
    a(f"s_add_u32 s{KVS}, s{KVS}, {KVB:#x}")
    a(f"s_lshl_b32 s{LX}, s{E}, 13")
    a(f"s_add_u32 s{KVS}, s{KVS}, s{LX}")

    def kv_issue(c):
        slot = (2 + c) % 4
        a(f"s_add_u32 s56, s{QBK}, {c}")
        a("s_and_b32 s56, s56, 7")
        a("s_lshl_b32 s56, s56, 15")
        a(f"s_add_u32 s56, s56, s{KVS}")
        a("s_add_u32 s57, s56, 4096")
        for half in range(2):
            a(f"s_add_u32 m0, s{LX}, {slot*SLOT + half*4096}")
            a("s_nop 0")
            for i in range(4):
                a(f"buffer_load_dwordx4 v1, {WS}, s{56+half} offen offset:{i*1024} sc1 lds")


    def q_kv0():
        a(f"s_lshl_b32 s56, s{H_}, 6")
        a(f"s_lshl_b32 s3, s{QBK}, 2")
        a("s_add_u32 s56, s56, s3")
        a(f"s_add_u32 s56, s56, s{E}")
        a("s_lshl_b32 s56, s56, 11")
        a(f"s_lshl_b32 s3, s{E}, 11")
        a(f"s_add_u32 m0, s3, {QLDS}")
        a("s_nop 0")
        for i in range(2):
            a(f"buffer_load_dwordx4 v1, {WS}, s56 offen offset:{i*1024} sc1 lds")
        kv_issue(0)

    a("s_waitcnt vmcnt(7)")
    if OPT["efb"]:
        a(f"s_cmp_lg_u32 s{E}, 0")
        a("s_cbranch_scc1 H_EFB1")
        a("s_mov_b32 exec_hi, 0xffff")
        a(f"v_cmp_ne_u32 vcc, s{TAG}, v19")
        a("s_mov_b32 exec_hi, -1")
        a("s_nop 4")
        a("s_cmp_eq_u64 vcc, 0")
        a("s_cselect_b32 s3, 1, 2")
        a(f"v_mov_b32 v{VCNT}, s3")
        a(f"ds_write_b32 v{VSY}, v{VCNT} offset:112")
        a("s_waitcnt lgkmcnt(0)")
        a.label("H_EFB1")
    a("s_barrier")
    if OPT["efb"]:
        a(f"ds_read_b32 v{TMP}, v{VSY} offset:112")
        a("s_waitcnt lgkmcnt(0)")
        a(f"v_readfirstlane_b32 s3, v{TMP}")
        a("s_nop 3")
        a("s_cmp_lg_u32 s3, 1")
        a("s_cbranch_scc1 H_SLOWFB")
        q_kv0()
        a("s_waitcnt vmcnt(10)")
        a("s_barrier")
        a("s_branch H_FBJ")
        a.label("H_SLOWFB")
    a("s_waitcnt vmcnt(0)")
    a("s_barrier")
    stamp(a, 4)
    shared_gpoll(0, 18, 0xffffffff, 0xffff, sleep=1)
    stamp(a, 5)
    q_kv0()
    a.label("H_FBJ")
    HA, TA, TT_ = H_, 60, 63
    a(f"s_lshl_b32 s{TA}, s{QBK}, 2")
    a(f"s_add_u32 s{TA}, s{TA}, s{E}")
    a(f"s_and_b32 s{TT_}, s{TA}, 31")
    a(f"v_add_u32 v18, {FA_OFF-FB_OFF:#x}, v18")
    a(f"s_lshl_b32 s61, s{TR}, 7")
    a(f"s_lshl_b32 s3, s{M_}, 2")
    a("s_add_u32 s61, s61, s3")
    a(f"s_add_u32 s61, s61, {FA_OFF:#x}")
    a("v_lshrrev_b32 v20, 3, v0")
    a("v_mul_u32_u24 v20, 896, v20")
    a("v_and_b32 v19, 7, v0")
    a("v_bfe_u32 v21, v0, 4, 1")
    a("v_lshlrev_b32 v21, 2, v21")
    a("v_xor_b32 v19, v19, v21")
    a("v_lshl_add_u32 v20, v19, 4, v20")
    AQ, AKC, AVC, AKP, AVP = 24, 32, 40, 48, 56
    CCR, CPR, AO, AP, APP, T0, T1 = 64, 80, 96, 112, 120, 124, 125
    a(f"s_mov_b32 s3, {NEG_BIG:#x}")
    for r in range(16):
        a(f"v_mov_b32 v{CCR+r}, s3")
    for r in range(12, 16):
        a(f"v_mov_b32 v{CPR+r}, s3")
    for r in range(12):
        a(f"v_mov_b32 v{CPR+r}, 0")
    for r in range(16):
        c = (r & 3) + 8 * (r >> 2)
        a(f"s_mov_b32 exec_lo, {(0xFF << c) & 0xFFFFFFFF:#x}")
        a(f"s_mov_b32 exec_hi, {(0xFF << (c + 4)) & 0xFFFFFFFF:#x}")
        a(f"v_mov_b32 v{CCR+r}, 0")
    a(f"s_cmp_eq_u32 s{TT_}, 0")
    a("s_cbranch_scc1 H_NOPREV")
    for r in range(12, 16):
        a(f"s_mov_b32 exec_lo, {(1 << (r & 3)) - 1:#x}")
        a(f"s_mov_b32 exec_hi, {(1 << ((r & 3) + 4)) - 1:#x}")
        a(f"v_mov_b32 v{CPR+r}, 0")
    a.label("H_NOPREV")
    a("s_mov_b64 exec, -1")
    srd(a, 28, 14, WO_BYTES)
    srd(a, 32, 8, WO_BYTES)
    WOS = 51
    a(f"s_mul_i32 s{WOS}, s{E}, {64*896}")
    a(f"s_min_u32 s3, s{NB}, 6")
    a("s_lshl_b32 s3, s3, 7")
    a(f"s_add_u32 s{WOS}, s{WOS}, s3")

    def wo_issue(sr, base, row0, n=8):
        for i in range(n):
            a(f"s_add_u32 s56, s{WOS}, {(row0 + i*8)*896}")
            a(f"s_add_u32 m0, s{LX}, {base + i*1024}")
            a("s_nop 0")
            a(f"buffer_load_dwordx4 v20, {sr}, s56 offen lds")

    if OPT["dsl"]:
        a(f"s_sleep {OPT['dsl']}")
    a("s_waitcnt vmcnt(0)")
    a("s_barrier")
    stamp(a, 6)
    kv_issue(1)
    kv_issue(2)
    a("s_waitcnt vmcnt(8)")
    a("s_barrier")
    kv_issue(3)
    a(f"s_cmp_lg_u32 s{E}, 0")
    a("s_cbranch_scc1 H_NOFA")
    flag_store(a, 61)
    a.label("H_NOFA")
    for c in (4, 5, 6):
        a("s_waitcnt vmcnt(8)")
        a("s_barrier")
        kv_issue(c)
        if c == 4:
            wo_issue("s[32:35]", MREG, 224, 5)
            a(f"s_cmp_eq_u32 s{E}, 3")
            a("s_cbranch_scc1 H_WA3")
            for i in range(5, 8):
                a(f"s_add_u32 s56, s{WOS}, {(224 + i*8)*896}")
                a(f"s_add_u32 m0, s{LX}, {MREG + i*1024}")
                a("s_nop 0")
                a("buffer_load_dwordx4 v20, s[32:35], s56 offen lds")
            a.label("H_WA3")
            if OPT["wpf"]:
                a("v_mul_u32_u24 v22, 896, v0")
                a(f"buffer_load_dword v23, v22, s[32:35], s{WOS} offen")
    shared_gpoll(1, 18, 0xffffffff, 0xffff, sleep=2)
    a("s_waitcnt vmcnt(8)")
    a(f"s_lshl_b32 s3, s{HA}, 6")
    a(f"s_add_u32 s3, s3, s{TA}")
    a("s_lshl_b32 s57, s3, 11")
    a(f"s_add_u32 s57, s57, {QA:#x}")
    a("s_lshl_b32 s58, s3, 12")
    a(f"s_add_u32 s58, s58, {KVA:#x}")
    a("s_sub_u32 s59, s58, 4096")
    a(f"s_cmp_eq_u32 s{TT_}, 0")
    a("s_cselect_b32 s59, s58, s59")
    for (reg, so, off) in ((AQ, 57, 0), (AQ + 4, 57, 1024), (AKC, 58, 0), (AKC + 4, 58, 1024), (AKP, 59, 0),
                           (AKP + 4, 59, 1024), (AVC, 58, 2048), (AVC + 4, 58, 3072), (AVP, 59, 3072)):
        a(f"buffer_load_dwordx4 {vr(reg,4)}, v1, {WS}, s{so} offen offset:{off} sc1")
    a("s_barrier")
    kv_issue(7)
    a("s_waitcnt vmcnt(11)")
    mfma(a, CCR, AKC, AQ)
    mfma(a, CPR, AKP, AQ)
    mfma(a, CCR, AKC + 4, AQ + 4)
    mfma(a, CPR, AKP + 4, AQ + 4)
    a("s_nop 15")
    a("s_nop 3")
    max16(a, T0, CCR, extra=[CPR + 12, CPR + 13, CPR + 14, CPR + 15])
    xhalf_max(a, T0, T1)
    rs = list(range(CCR, CCR + 16)) + list(range(CPR + 12, CPR + 16))
    for r in rs:
        a(f"v_sub_f32 v{r}, v{r}, v{T0}")
    for r in rs:
        a(f"v_exp_f32 v{r}, v{r}")
    a("s_nop 0")
    for j in range(8):
        a(f"v_cvt_pk_bf16_f32 v{AP+j}, v{CCR+2*j}, v{CCR+2*j+1}")
    a(f"v_mov_b32 v{APP}, 0")
    a(f"v_mov_b32 v{APP+1}, 0")
    a(f"v_cvt_pk_bf16_f32 v{APP+2}, v{CPR+12}, v{CPR+13}")
    a(f"v_cvt_pk_bf16_f32 v{APP+3}, v{CPR+14}, v{CPR+15}")
    a("s_waitcnt vmcnt(8)")
    a("s_nop 0")
    mfma(a, AO, AVC, AP, 0)
    mfma(a, AO, AVC + 4, AP + 4)
    mfma(a, AO, AVP, APP)
    a("s_nop 15")
    a("s_nop 3")
    a(f"v_mov_b32 v{T0}, v{AO+12}")
    a(f"v_mov_b32 v{T1}, v{AO+12}")
    a("s_nop 1")
    a(f"v_permlane32_swap_b32 v{T0}, v{T1}")
    a("s_nop 1")
    a(f"v_rcp_f32 v{T1}, v{T1}")
    a("s_nop 0")
    for r in range(16):
        a(f"v_mul_f32 v{AO+r}, v{AO+r}, v{T1}")
    for j in range(8):
        a(f"v_cvt_pk_bf16_f32 v{AP+j}, v{AO+2*j}, v{AO+2*j+1}")
    a("s_mov_b32 exec_lo, 0")
    a(f"v_mov_b32 v{AP+6}, 0")
    a(f"v_mov_b32 v{AP+7}, 0")
    a("s_mov_b32 exec_lo, -1")
    a(f"s_lshl_b32 s57, s{TA}, 4")
    a(f"s_add_u32 s57, s57, s{HA}")
    a("s_lshl_b32 s57, s57, 11")
    a(f"s_add_u32 s57, s57, {OFA:#x}")
    a(f"buffer_store_dwordx4 {vr(AP,4)}, v1, {WS}, s57 offen sc1")
    a(f"buffer_store_dwordx4 {vr(AP+4,4)}, v1, {WS}, s57 offen offset:1024 sc1")
    a(f"s_lshl_b32 s3, s{TT_}, 7")
    a(f"s_lshr_b32 s58, s{TA}, 5")
    a("s_lshl_b32 s58, s58, 4")
    a(f"s_add_u32 s58, s58, s{HA}")
    a("s_lshl_b32 s58, s58, 2")
    a("s_add_u32 s58, s58, s3")
    a(f"s_add_u32 s58, s58, {FOA_OFF:#x}")
    a("s_barrier")
    a("s_waitcnt vmcnt(0)")
    flag_store(a, 58)
    a("s_cmp_ge_u32 s2, 224")
    a("s_cbranch_scc1 H_NOPROJ")
    a(f"s_lshl_b32 s3, s{MB}, 7")
    a(f"s_add_u32 s3, s3, {FOA_OFF:#x}")
    a("v_lshlrev_b32 v18, 2, v0")
    a("v_add_u32 v18, s3, v18")
    wo_issue("s[28:31]", 2 * SLOT, 0)
    a("s_barrier")
    wo_issue("s[28:31]", 3 * SLOT, 256)
    stamp(a, 7)
    shared_gpoll(2, 18, 0xffffffff, 0, sleep=2)
    stamp(a, 8)
    a("s_barrier")
    wo_issue("s[32:35]", 0, 0)
    a("s_waitcnt vmcnt(0)")
    a("s_barrier")
    a("s_branch H_DONE")
    a.label("H_NOPROJ")
    a("s_barrier")
    a("s_barrier")
    a("s_barrier")
    a.label("H_DONE")
    stamp(a, 13)
    stamp(a, 14, True)
    stamp_flush(a, 15)
    a("s_endpgm")


HEADER = """; Fused single-launch kernel (generated by gen/gen13.py, hand-designed instruction streams):
"""


def main():
    out = sys.argv[1]
    a = Asm()
    a.raw(HEADER.rstrip())
    a.raw(f"; @launch grid=(256,1,1) block=(768,1,1) lds={LDS_BYTES}")
    a.raw('.amdgcn_target "amdgcn-amd-amdhsa--gfx950"')
    gen(a)
    open(out, "w").write(a.text())


if __name__ == "__main__":
    main()
```

```python
import math, struct, sys

NAME = "concat_heads__sliding_local_dilated__softmax_full_mha__prompt"
OPT = dict(tlb=0, shuf=0, rt=0, fsl=1, trs=2, cpf=1, stamp=0, dbg=0, sync="barrier", pre=0, map48=1, outsc=2, fbn=8, lst=0)
for x in sys.argv[2:]:
    k, v = x.split("=")
    OPT[k] = int(v) if v.lstrip("-").isdigit() else v
STAMP = OPT["stamp"] or OPT["dbg"]
ASYNC = OPT["sync"] == "async"


def f32bits(x):
    return struct.unpack("<I", struct.pack("<f", x))[0]


CSCALE = (28 ** -0.5) * math.log2(math.e)
QB, KVB, QA, KVA, OFA, OFB = 0x000000, 0x200000, 0x600000, 0x800000, 0xC00000, 0xE00000
FL = 0x1000000
FB_OFF, FA_OFF, FOA_OFF, FOB_OFF = FL + 0x1000, FL + 0x2000, FL + 0x3000, FL + 0x10000
STAMP_OFF = 0x1100000
WS_BYTES = 0x1020000
X_BYTES = 2048 * 448 * 2
W_BYTES = 448 * 1344 * 2
WO_BYTES = 448 * 448 * 2
OUT_BYTES = 2048 * 896 * 2
NEG_BIG = f32bits(-3.0e38)
M_OFF = 64.0
SLOT = 32768
GS = 28672
NGS = 5
MREG = 4 * SLOT
QLDS = NGS * GS
LDS_BYTES = MREG + 32768
SY = MREG + 0x7F00
POLL_MAX = 1 << 18
LPOLL_MAX = 1 << 22


class Asm:
    def __init__(self):
        self.lines = []
        self.uid = 0

    def __call__(self, s):
        self.lines.append("    " + s)

    def label(self, l):
        self.lines.append(l + ":")

    def raw(self, s):
        self.lines.append(s)

    def new(self, p):
        self.uid += 1
        return f"{p}_{self.uid}"

    def text(self):
        return "\n".join(self.lines) + "\n"


def vr(a, n):
    return f"v[{a}:{a+n-1}]"


def srd(a, d, ptr, nbytes):
    a(f"s_mov_b32 s{d}, s{ptr}")
    a(f"s_and_b32 s{d+1}, s{ptr+1}, 0xffff")
    a(f"s_mov_b32 s{d+2}, {nbytes:#x}")
    a(f"s_mov_b32 s{d+3}, 0x20000")


def mfma(a, d, A, B, C=None):
    c = "0" if C == 0 else vr(d if C is None else C, 16)
    a(f"v_mfma_f32_32x32x16_bf16 {vr(d,16)}, {vr(A,4)}, {vr(B,4)}, {c}")


def stamp(a, i, real=False):
    if not STAMP:
        return
    a(f"{'s_memrealtime' if (real or OPT['rt']) else 's_memtime'} s[{64+2*i}:{65+2*i}]")
    a("s_waitcnt lgkmcnt(0)")


def lstamp(a, sidx):
    if not OPT["lst"]:
        return
    a("s_memtime s[94:95]")
    a(f"s_mov_b32 m0, {sidx}")
    a("s_waitcnt lgkmcnt(0)")
    a("v_writelane_b32 v167, s94, m0")


def stamp_flush(a, n):
    if not STAMP:
        return
    a("s_waitcnt lgkmcnt(0)")
    if OPT["dbg"]:
        L = a.new("SF")
        a("s_cmp_lg_u32 s2, 37")
        a(f"s_cbranch_scc1 {L}")
        a(f"s_cmp_lg_u32 s{W_}, 0")
        a(f"s_cbranch_scc1 {L}")
        a("v_mov_b32 v0, 0")
        for i in range(n):
            base = 66 if i in (1, 14) else 64
            a(f"s_sub_u32 s60, s{64+2*i}, s{base}")
            a("v_mov_b32 v2, s60")
            a(f"global_store_dword v0, v2, s[18:19] offset:{4*i}")
            a("s_nop 1")
        a.label(L)
        return
    a("s_mul_i32 s60, s2, 12")
    a(f"s_add_u32 s60, s60, s{W_}")
    a("s_lshl_b32 s60, s60, 7")
    a(f"s_add_u32 s60, s60, {STAMP_OFF:#x}")
    a("v_mov_b32 v0, s60")
    for i in range(n):
        a(f"v_mov_b32 v2, s{64+2*i}")
        a(f"global_store_dword v0, v2, s[20:21] offset:{4*i}")
        a("s_nop 1")
    if OPT["lst"]:
        for i in range(16):
            a(f"v_readlane_b32 s61, v167, {i}")
            a("s_nop 3")
            a("v_mov_b32 v2, s61")
            a(f"global_store_dword v0, v2, s[20:21] offset:{64+4*i}")
            a("s_nop 1")


def max16(a, dst, S, extra=()):
    regs = [S + r for r in range(16)] + list(extra)
    a(f"v_max3_f32 v{dst}, v{regs[0]}, v{regs[1]}, v{regs[2]}")
    k = 3
    while k + 1 < len(regs):
        a(f"v_max3_f32 v{dst}, v{dst}, v{regs[k]}, v{regs[k+1]}")
        k += 2
    if k < len(regs):
        a(f"v_max_f32 v{dst}, v{dst}, v{regs[k]}")


def xhalf_max(a, m, t):
    a(f"v_mov_b32 v{t}, v{m}")
    a("s_nop 1")
    a(f"v_permlane32_swap_b32 v{m}, v{t}")
    a("s_nop 1")
    a(f"v_max_f32 v{m}, v{m}, v{t}")


WS = "s[24:27]"
W_, M_, TR, H_, QBK, MB, NB, TAG = 40, 41, 42, 43, 44, 45, 46, 47
VSY, VTAG, VZ = 164, 165, 166


def gpoll(a, vaddr, mlo, mhi, vtmp, sleep=4):
    L = a.new("GP")
    a(f"s_mov_b32 exec_lo, {mlo:#x}")
    a(f"s_mov_b32 exec_hi, {mhi:#x}")
    a(f"s_mov_b32 s62, {POLL_MAX}")
    a.label(L)
    a(f"buffer_load_dword v{vtmp}, v{vaddr}, {WS}, 0 offen sc1")
    a("s_waitcnt vmcnt(0)")
    a(f"v_cmp_ne_u32 vcc, s{TAG}, v{vtmp}")
    a("s_sub_u32 s62, s62, 1")
    a("s_nop 3")
    a(f"s_cbranch_vccz {L}_OK")
    a(f"s_sleep {sleep}")
    a("s_cmp_lg_u32 s62, 0")
    a(f"s_cbranch_scc1 {L}")
    a.label(L + "_OK")
    a("s_mov_b64 exec, -1")


def lpoll(a, off, nwords, thr, t, sleep=1):
    L = a.new("LP")
    a(f"s_mov_b32 s62, {LPOLL_MAX}")
    a.label(L)
    if nwords == 1:
        a(f"ds_read_b32 v{t}, v{VSY} offset:{off}")
        a("s_waitcnt lgkmcnt(0)")
    else:
        a(f"ds_read_b128 {vr(t,4)}, v{VSY} offset:{off}")
        if nwords == 8:
            a(f"ds_read_b128 {vr(t+4,4)}, v{VSY} offset:{off+16}")
        a("s_waitcnt lgkmcnt(0)")
        a(f"v_min3_u32 v{t}, v{t}, v{t+1}, v{t+2}")
        if nwords == 8:
            a(f"v_min3_u32 v{t}, v{t}, v{t+3}, v{t+4}")
            a(f"v_min3_u32 v{t}, v{t}, v{t+5}, v{t+6}")
            a(f"v_min_u32 v{t}, v{t}, v{t+7}")
        else:
            a(f"v_min_u32 v{t}, v{t}, v{t+3}")
    a(f"v_cmp_gt_u32 vcc, {thr}, v{t}")
    a("s_sub_u32 s62, s62, 1")
    a("s_nop 3")
    a(f"s_cbranch_vccz {L}_OK")
    if sleep:
        a(f"s_sleep {sleep}")
    a("s_cmp_lg_u32 s62, 0")
    a(f"s_cbranch_scc1 {L}")
    a.label(L + "_OK")


def flag_store(a, soff):
    a("s_mov_b64 exec, 1")
    a(f"buffer_store_dword v{VTAG}, v{VZ}, {WS}, s{soff} offen sc1")
    a("s_mov_b64 exec, -1")


def fob_store(a):
    a("s_mov_b64 exec, 0x7f")
    a(f"buffer_store_dword v{VTAG}, v154, {WS}, s56 offen sc1")
    a("s_mov_b64 exec, -1")


def tag_finish(a):
    a("s_waitcnt lgkmcnt(0)")
    a(f"s_mul_i32 s{TAG}, s{TAG}, 0x9e3779b1")
    a(f"s_add_u32 s{TAG}, s{TAG}, 0x7f4a7c15")
    a(f"v_mov_b32 v{VTAG}, s{TAG}")


def gen(a):
    kname = NAME + "_kernel"
    a.raw(".text")
    a.raw(f".globl {kname}")
    a.raw(".p2align 8")
    a.raw(f".type {kname},@function")
    a.label(kname)
    a("s_cmp_ge_u32 s2, 256")
    a("s_cbranch_scc1 L_END")
    if OPT["shuf"]:
        a("s_lshr_b32 s3, s2, 3")
        a("s_and_b32 s2, s2, 7")
        a("s_lshl_b32 s2, s2, 5")
        a("s_or_b32 s2, s2, s3")
    a("s_load_dwordx16 s[4:19], s[0:1], 0")
    a("s_load_dwordx2 s[20:21], s[0:1], 64")
    a("v_lshrrev_b32 v1, 6, v0")
    a("v_and_b32 v0, 63, v0")
    a(f"v_readfirstlane_b32 s{W_}, v1")
    a("v_lshlrev_b32 v1, 4, v0")
    if OPT["map48"]:
        a(f"s_and_b32 s{M_}, s2, 3")
        a(f"s_lshl_b32 s{M_}, s{M_}, 2")
        a("s_bfe_u32 s3, s2, 0x20003")
        a(f"s_add_u32 s{M_}, s{M_}, s3")
        a(f"s_bfe_u32 s{TR}, s2, 0x10002")
        a(f"s_lshl_b32 s{TR}, s{TR}, 3")
        a("s_lshr_b32 s3, s2, 5")
        a(f"s_add_u32 s{TR}, s{TR}, s3")
    else:
        a(f"s_and_b32 s{M_}, s2, 1")
        a(f"s_lshl_b32 s{M_}, s{M_}, 3")
        a("s_bfe_u32 s3, s2, 0x30003")
        a(f"s_add_u32 s{M_}, s{M_}, s3")
        a(f"s_bfe_u32 s{TR}, s2, 0x20001")
        a(f"s_lshl_b32 s{TR}, s{TR}, 2")
        a("s_lshr_b32 s3, s2, 6")
        a(f"s_add_u32 s{TR}, s{TR}, s3")
    a(f"s_cmp_lt_u32 s{W_}, 8")
    a("s_cbranch_scc1 L_COMPUTE")
    gen_helper(a)
    gen_compute(a)
    a.label("L_END")
    a("s_endpgm")
    a.raw('.section .rodata,"a"')
    a.raw(".p2align 6")
    a.raw(f".amdhsa_kernel {kname}")
    a.raw("  .amdhsa_next_free_vgpr 168")
    a.raw("  .amdhsa_next_free_sgpr 100")
    a.raw("  .amdhsa_accum_offset 168")
    a.raw("  .amdhsa_group_segment_fixed_size 0")
    a.raw("  .amdhsa_kernarg_size 72")
    a.raw("  .amdhsa_user_sgpr_count 2")
    a.raw("  .amdhsa_user_sgpr_kernarg_segment_ptr 1")
    a.raw("  .amdhsa_system_sgpr_workgroup_id_x 1")
    a.raw(".end_amdhsa_kernel")


def common_late(a):
    a(f"s_and_b32 s{H_}, s2, 15")
    a(f"s_lshr_b32 s{QBK}, s2, 4")
    a(f"s_and_b32 s{MB}, s2, 7")
    a(f"s_lshl_b32 s{MB}, s{MB}, 2")
    a("s_bfe_u32 s3, s2, 0x20003")
    a(f"s_add_u32 s{MB}, s{MB}, s3")
    a(f"s_lshr_b32 s{NB}, s2, 5")
    a(f"v_mov_b32 v{VSY}, {SY:#x}")
    a(f"v_mov_b32 v{VZ}, 0")
    a(f"s_add_u32 s22, s20, {FL:#x}")
    a("s_addc_u32 s23, s21, 0")
    a(f"s_load_dword s{TAG}, s[22:23], 0")
    srd(a, 24, 20, WS_BYTES)


def gen_compute(a):
    U, G, N, TT, QBASE, KVBASE = 48, 49, 50, 51, 52, 53
    SLB = 61
    VFREE, VCNT = 163, 162
    a.label("L_COMPUTE")
    a(f"s_and_b32 s{U}, s{W_}, 3")
    a(f"s_lshr_b32 s{G}, s{W_}, 2")
    a(f"s_cmp_lg_u32 s{W_}, 0")
    a("s_cbranch_scc1 C_NOZ")
    a("v_lshlrev_b32 v2, 2, v0")
    a(f"v_add_u32 v2, {SY:#x}, v2")
    a("v_mov_b32 v3, 0")
    a("ds_write_b32 v2, v3")
    a.label("C_NOZ")
    if OPT["cpf"]:
        a(f"s_sub_u32 s3, s{W_}, 1")
        a("s_cmp_gt_u32 s3, 1")
        a("s_cbranch_scc1 C_NOCPF")
        a("s_getpc_b64 s[56:57]")
        a.label("C_PCREF")
        a("s_lshl_b32 s3, s3, 13")
        a("v_lshlrev_b32 v2, 7, v0")
        a("v_add_u32 v2, s3, v2")
        a(f"v_min_u32 v2, L_END-{NAME}_kernel, v2")
        a(f"s_sub_u32 s56, s56, C_PCREF-{NAME}_kernel")
        a("s_subb_u32 s57, s57, 0")
        a("v_mov_b32 v3, s57")
        a("v_add_co_u32 v2, vcc, s56, v2")
        a("s_nop 1")
        a("v_addc_co_u32 v3, vcc, 0, v3, vcc")
        a("global_load_dword v160, v[2:3], off")
        a.label("C_NOCPF")
    a("s_waitcnt lgkmcnt(0)")
    if ASYNC:
        a("s_barrier")
    stamp(a, 0)
    stamp(a, 1, True)
    common_late(a)
    if OPT["tlb"]:
        for wv, (ptr, nbytes, sh) in enumerate(((20, WS_BYTES, 18), (16, OUT_BYTES, 16), (8, WO_BYTES, 13),
                                                (14, WO_BYTES, 13), (4, X_BYTES, 15), (6, W_BYTES, 15))):
            L = a.new("TL")
            a(f"s_cmp_lg_u32 s{W_}, {2+wv}")
            a(f"s_cbranch_scc1 {L}")
            srd(a, 28, ptr, nbytes)
            a(f"v_lshlrev_b32 v2, {sh}, v0")
            a("buffer_load_dword v161, v2, s[28:31], 0 offen")
            a.label(L)
    a(f"s_lshl_b32 s3, s{W_}, 2")
    a(f"s_add_u32 s3, s3, {SY+16:#x}")
    a(f"v_mov_b32 v{VFREE}, s3")
    a(f"v_mov_b32 v{VCNT}, 0")
    a("v_and_b32 v16, 31, v0")
    a(f"s_lshl_b32 s3, s{U}, 5")
    a("v_add_u32 v16, s3, v16")
    a("v_bfe_u32 v17, v16, 1, 3")
    a("v_lshrrev_b32 v18, 5, v0")
    a("v_lshlrev_b32 v16, 7, v16")
    for ks in range(4):
        a(f"v_or_b32 v19, {2*ks}, v18")
        a("v_xor_b32 v19, v19, v17")
        a(f"v_lshl_add_u32 v{2+ks}, v19, 4, v16")
    a("v_bfe_u32 v19, v0, 2, 2")
    a("v_lshl_add_u32 v19, v18, 3, v19")
    a("v_mul_u32_u24 v19, 192, v19")
    a("v_bfe_u32 v20, v0, 4, 1")
    a("v_lshl_add_u32 v19, v20, 5, v19")
    a("v_and_b32 v20, 3, v0")
    a("v_lshl_add_u32 v19, v20, 3, v19")
    a(f"s_and_b32 s3, s{TR}, 1")
    a("s_lshl_b32 s3, s3, 3")
    a(f"s_mul_i32 s54, s{G}, 112")
    a("s_add_u32 s3, s3, s54")
    a("s_add_u32 s3, s3, 16384")
    a("v_add_u32 v6, s3, v19")
    a(f"s_mov_b32 s{SLB}, {2*GS}")
    a(f"s_mul_i32 s54, s{TR}, 3")
    a(f"s_lshl_b32 s3, s{G}, 1")
    a("s_add_u32 s54, s54, s3")
    a(f"s_lshl_b32 s{TT}, s{M_}, 2")
    a(f"s_add_u32 s{TT}, s{TT}, s{U}")
    a(f"s_mov_b32 s{QBASE}, {QB:#x}")
    a(f"s_mov_b32 s{KVBASE}, {KVB:#x}")
    a(f"s_mov_b32 s{N}, 0")
    a(f"s_lshl_b32 s63, s{TR}, 7")
    a(f"s_lshl_b32 s3, s{M_}, 2")
    a("s_add_u32 s63, s63, s3")
    XF, WF, ACC, PK, TMP = [24, 72], [40, 88], [120, 136], 152, 16

    def addr():
        for r in range(5):
            a(f"v_add_u32 v{8+r}, s{SLB}, v{2+r}")
        a(f"s_add_u32 s{SLB}, s{SLB}, {GS}")
        a(f"s_cmp_eq_u32 s{SLB}, {NGS*GS}")
        a(f"s_cselect_b32 s{SLB}, 0, s{SLB}")
        a(f"v_add_u32 v{VCNT}, 1, v{VCNT}")

    def reads(buf, ns):
        for ks in range(4):
            a(f"ds_read_b128 {vr(XF[buf]+4*ks,4)}, v{8+ks}")
            for i in range(ns):
                for t in range(2):
                    off = (16 * ks + 4 * t) * 192 + i * 56
                    a(f"ds_read_b64_tr_b16 {vr(WF[buf]+8*ks+4*i+2*t,2)}, v12 offset:{off}")

    def mfmas(types, buf):
        for ks in range(4):
            for i, ty in enumerate(types):
                if ty == 'T':
                    mfma(a, ACC[i], WF[buf] + 8 * ks + 4 * i, XF[buf] + 4 * ks)
                else:
                    mfma(a, ACC[i], XF[buf] + 4 * ks, WF[buf] + 8 * ks + 4 * i)

    def done_signal(doff, foff):
        L = a.new("DS")
        a("s_waitcnt vmcnt(0)")
        a(f"v_mov_b32 v{TMP}, 1")
        a("s_mov_b64 exec, 1")
        a(f"ds_add_rtn_u32 v{TMP+1}, v{VSY}, v{TMP} offset:{doff}")
        a("s_waitcnt lgkmcnt(0)")
        a(f"v_readfirstlane_b32 s3, v{TMP+1}")
        a("s_mov_b64 exec, -1")
        a("s_nop 3")
        a("s_cmp_lg_u32 s3, 7")
        a(f"s_cbranch_scc1 {L}")
        a(f"s_add_u32 s3, s63, {foff:#x}")
        flag_store(a, 3)
        a.label(L)

    for r in range(32):
        a(f"v_mov_b32 v{ACC[0]+r}, 0")
    for r in range(16):
        a(f"v_mov_b32 v{XF[1]+r}, 0")
    for r in range(32):
        a(f"v_mov_b32 v{WF[1]+r}, 0")
    addr()
    tag_finish(a)
    stamp(a, 2)
    if ASYNC:
        lpoll(a, 0, 4, 1, TMP, sleep=1)
    a(f"s_cmp_eq_u32 s{G}, 0")
    a("s_cbranch_scc0 C_SEL1")
    a(f"s_cmp_le_u32 s{TR}, 10")
    a("s_cbranch_scc1 C_G_TT_LOOP")
    a("s_branch C_G_NN_LOOP")
    a.label("C_SEL1")
    a(f"s_cmp_le_u32 s{TR}, 9")
    a("s_cbranch_scc1 C_G_T_LOOP")
    a("s_branch C_G_N_LOOP")

    for types in ("TT", "NN", "T", "N"):
        ns = len(types)
        L = f"C_G_{types}"

        def half(buf, k):
            if not ASYNC:
                a("s_barrier")
            reads(buf, ns)
            mfmas(types, 1 - buf)
            if ASYNC:
                a(f"ds_read_b128 {vr(TMP,4)}, v{VSY}")
                a(f"s_add_u32 s55, s{N}, {k}")
                a("s_min_u32 s55, s55, 14")
                a("s_waitcnt lgkmcnt(0)")
                a(f"ds_write_b32 v{VFREE}, v{VCNT}")
                if OPT["lst"]:
                    a(f"s_add_u32 s96, s{N}, {k-2}")
                    lstamp(a, "s96")
                a(f"v_min3_u32 v{TMP}, v{TMP}, v{TMP+1}, v{TMP+2}")
                a(f"v_min_u32 v{TMP}, v{TMP}, v{TMP+3}")
                a(f"v_cmp_gt_u32 vcc, s55, v{TMP}")
                addr()
                LL = a.new("CH")
                a(f"s_cbranch_vccz {LL}")
                lpoll(a, 0, 4, "s55", TMP, sleep=0)
                a.label(LL)
            else:
                addr()

        a.label(L + "_LOOP")
        half(0, 2)
        a(f"s_cmp_lg_u32 s{N}, {OPT['fbn']}")
        a(f"s_cbranch_scc1 {L}_NOW")
        if ASYNC:
            done_signal(48, FB_OFF)
        else:
            a("s_waitcnt vmcnt(0)")
        a.label(L + "_NOW")
        if not ASYNC:
            a("s_waitcnt lgkmcnt(0)")
        half(1, 3)
        a(f"s_cmp_eq_u32 s{N}, 6")
        a(f"s_cbranch_scc1 {L}_EPI")
        a.label(L + "_BACK")
        if not ASYNC:
            a("s_waitcnt lgkmcnt(0)")
        a(f"s_add_u32 s{N}, s{N}, 2")
        a(f"s_cmp_lt_u32 s{N}, 14")
        a(f"s_cbranch_scc1 {L}_LOOP")
        mfmas(types, 1)
        a.label(L + "_EPI")
        a("s_nop 15")
        for i, ty in enumerate(types):
            A = ACC[i]
            a(f"s_add_u32 s56, s54, {i}")
            a("s_lshr_b32 s57, s56, 4")
            a("s_and_b32 s56, s56, 15")
            a("s_lshl_b32 s56, s56, 6")
            a(f"s_add_u32 s56, s56, s{TT}")
            if ty == 'T':
                a("s_lshl_b32 s58, s56, 11")
                a(f"s_add_u32 s58, s58, s{QBASE}")
                a("s_lshl_b32 s59, s56, 12")
                a(f"s_add_u32 s59, s59, s{KVBASE}")
                a(f"s_mov_b32 s60, {f32bits(CSCALE):#x}")
                a("s_cmp_eq_u32 s57, 0")
                a("s_cselect_b32 s58, s58, s59")
                a("s_cselect_b32 s60, s60, 1.0")
                for r in range(16):
                    a(f"v_mul_f32 v{A+r}, s60, v{A+r}")
                for j in range(8):
                    a(f"v_cvt_pk_bf16_f32 v{PK+j}, v{A+2*j}, v{A+2*j+1}")
                a("s_mov_b32 exec_lo, 0")
                a(f"v_mov_b32 v{PK+6}, 0")
                a(f"v_mov_b32 v{PK+7}, 0")
                a("s_mov_b32 exec_lo, -1")
            else:
                a("s_lshl_b32 s58, s56, 12")
                a(f"s_add_u32 s58, s58, s{KVBASE}")
                a("s_add_u32 s58, s58, 2048")
                for j in range(8):
                    a(f"v_cvt_pk_bf16_f32 v{PK+j}, v{A+2*j}, v{A+2*j+1}")
                a("s_mov_b32 exec_lo, 0xe0000000")
                a("s_mov_b32 exec_hi, 0xe0000000")
                for j in range(8):
                    a(f"v_mov_b32 v{PK+j}, 0")
                a("s_mov_b32 exec_lo, 0x10000000")
                a("s_mov_b32 exec_hi, 0x10000000")
                for j in range(8):
                    a(f"v_mov_b32 v{PK+j}, 0x3f803f80")
                a("s_mov_b64 exec, -1")
            a(f"buffer_store_dwordx4 {vr(PK,4)}, v1, {WS}, s58 offen sc1")
            a(f"buffer_store_dwordx4 {vr(PK+4,4)}, v1, {WS}, s58 offen offset:1024 sc1")
            a("s_nop 1")
        a(f"s_cmp_eq_u32 s{N}, 14")
        a("s_cbranch_scc1 C_ATT")
        stamp(a, 4)
        for i in range(ns):
            for r in range(16):
                a(f"v_mov_b32 v{ACC[i]+r}, 0")
        a(f"s_and_b32 s3, s{U}, 1")
        a("s_lshl_b32 s3, s3, 5")
        a(f"s_lshl_b32 s{TT}, s{M_}, 1")
        a(f"s_add_u32 s{TT}, s{TT}, s3")
        a(f"s_lshr_b32 s3, s{U}, 1")
        a(f"s_add_u32 s{TT}, s{TT}, s3")
        a(f"s_mov_b32 s{QBASE}, {QA:#x}")
        a(f"s_mov_b32 s{KVBASE}, {KVA:#x}")
        a(f"s_add_u32 s{TR}, s{TR}, {OPT['trs']}")
        a(f"s_and_b32 s{TR}, s{TR}, 15")
        a(f"s_mul_i32 s54, s{TR}, 3")
        a(f"s_lshl_b32 s3, s{G}, 1")
        a("s_add_u32 s54, s54, s3")
        a(f"s_cmp_le_u32 s{TR}, {10 if ns == 2 else 9}")
        a(f"s_cbranch_scc1 C_G_{'T'*ns}_BACK")
        a(f"s_branch C_G_{'N'*ns}_BACK")

    Q0, Q1, KF, VF, PA_, PB_, T0, T1 = 4, 8, 12, 20, 28, 36, 44, 45
    O, CM, SA, SB = 48, 64, 80, 96
    OFR, FU = 112, 144
    VCUR, VNXT = 2, 3
    VX1, VX2 = 152, 153
    VW0, VW1, VOA, VOB, VEX, VFOB = 156, 157, 158, 159, 160, 161
    QT, PT, KQ = 51, 52, 53
    a.label("C_ATT")
    stamp(a, 5)
    a(f"s_lshl_b32 s{QT}, s{QBK}, 2")
    a(f"s_add_u32 s{QT}, s{QT}, s{U}")
    a(f"s_lshl_b32 s3, s{U}, 11")
    a(f"s_add_u32 s3, s3, {QLDS}")
    a("v_add_u32 v46, s3, v1")
    a(f"s_lshl_b32 s3, s{G}, 14")
    a(f"s_add_u32 s3, s3, {2*SLOT}")
    a(f"v_add_u32 v{VCUR}, s3, v1")
    a(f"v_add_u32 v{VNXT}, {SLOT}, v{VCUR}")
    a(f"v_add_u32 v47, {2*SLOT}, v1")
    for r in range(16):
        a(f"v_mov_b32 v{O+r}, 0")
    for r in range(4):
        a(f"v_mov_b32 v{PB_+4+r}, 0")
        a(f"v_mov_b32 v{VF+4+r}, 0")
    a(f"s_and_b32 s{PT}, s{W_}, 1")
    a(f"s_bfe_u32 s{KQ}, s{W_}, 0x10001")
    a(f"s_lshl_b32 s3, s{U}, 12")
    a(f"s_add_u32 s3, s3, {SLOT}")
    a(f"v_add_u32 v{VX1}, s3, v1")
    a(f"s_lshl_b32 s3, s{U}, 8")
    a(f"s_add_u32 s3, s3, {SLOT+16384}")
    a(f"v_lshlrev_b32 v{VX2}, 2, v0")
    a(f"v_add_u32 v{VX2}, s3, v{VX2}")
    a("v_lshrrev_b32 v6, 5, v0")
    a("v_bfe_u32 v7, v0, 2, 2")
    a("v_lshl_add_u32 v6, v6, 2, v7")
    a("v_lshlrev_b32 v6, 7, v6")
    a("v_bfe_u32 v7, v0, 4, 1")
    a("v_lshl_add_u32 v6, v7, 5, v6")
    a("v_and_b32 v7, 3, v0")
    a("v_lshl_add_u32 v6, v7, 3, v6")
    a("v_bfe_u32 v7, v0, 3, 1")
    a(f"v_lshl_add_u32 v{VW0}, v7, 6, v6")
    a(f"s_mul_i32 s3, s{KQ}, {8*28*128}")
    a(f"s_add_u32 s3, s3, {2*SLOT}")
    a(f"s_mul_i32 s60, s{KQ}, {MREG}")
    a(f"s_cmp_eq_u32 s{G}, 1")
    a("s_cselect_b32 s3, s3, s60")
    a(f"v_add_u32 v{VW0}, s3, v{VW0}")
    a(f"v_xor_b32 v{VW1}, 64, v{VW0}")
    a(f"s_lshl_b32 s3, s{W_}, 12")
    a(f"s_add_u32 s3, s3, {SLOT}")
    a(f"v_add_u32 v{VEX}, s3, v1")
    a(f"s_xor_b32 s3, s{W_}, 2")
    a("s_lshl_b32 s3, s3, 12")
    a(f"s_add_u32 s3, s3, {SLOT}")
    a(f"v_add_u32 v{VOB}, s3, v1")
    srd(a, 36, 16, OUT_BYTES)
    a("v_and_b32 v11, 31, v0")
    a(f"s_xor_b32 s3, s{G}, 1")
    a("v_lshlrev_b32 v11, s3, v11")
    a(f"s_mul_i32 s3, s{G}, 5")
    a(f"s_lshl_b32 s3, s{PT}, s3")
    a(f"s_lshl_b32 s60, s{MB}, 6")
    a("s_add_u32 s3, s3, s60")
    a(f"v_add_u32 v{VOA}, s3, v11")
    a(f"v_mul_u32_u24 v{VOA}, 1792, v{VOA}")
    a("v_lshrrev_b32 v11, 5, v0")
    a(f"v_lshl_add_u32 v{VOA}, v11, 4, v{VOA}")
    a(f"s_lshl_b32 s60, s{NB}, 7")
    a(f"s_lshl_b32 s3, s{KQ}, 6")
    a("s_add_u32 s60, s60, s3")
    a(f"s_mul_i32 s3, s{G}, 896")
    a("s_add_u32 s60, s60, s3")
    a(f"s_lshl_b32 s3, s{MB}, 1")
    a(f"s_add_u32 s3, s3, s{PT}")
    a("s_lshl_b32 s59, s3, 15")
    a(f"s_add_u32 s59, s59, {OFB:#x}")
    a("s_lshl_b32 s3, s3, 3")
    a(f"s_add_u32 s3, s3, s{NB}")
    a("s_lshl_b32 s3, s3, 7")
    a(f"s_lshl_b32 s56, s{KQ}, 6")
    a("s_add_u32 s3, s3, s56")
    a(f"s_add_u32 s3, s3, {FOB_OFF:#x}")
    a(f"v_lshlrev_b32 v{VFOB}, 2, v0")
    a(f"v_add_u32 v{VFOB}, s3, v{VFOB}")
    a(f"s_lshl_b32 s58, s{PT}, 5")
    a(f"s_add_u32 s58, s58, s{MB}")
    a("s_lshl_b32 s58, s58, 15")
    a(f"s_add_u32 s58, s58, {OFA:#x}")
    a(f"s_cmp_eq_u32 s{G}, 1")
    a("s_cselect_b32 s58, s59, s58")
    a(f"s_lshl_b32 s3, s{KQ}, 14")
    a("s_add_u32 s58, s58, s3")
    a("s_add_u32 s59, s58, 4096")
    a("s_add_u32 s61, s58, 8192")
    a("s_add_u32 s63, s58, 12288")
    a(f"s_lshl_b32 s57, s{QT}, 4")
    a(f"s_add_u32 s57, s57, s{H_}")
    a("s_lshl_b32 s57, s57, 1")
    a(f"s_add_u32 s57, s57, s{G}")
    a("s_and_b32 s56, s57, 31")
    a("s_lshl_b32 s56, s56, 2")
    a(f"s_lshl_b32 s3, s{QT}, 10")
    a("s_add_u32 s56, s56, s3")
    a(f"s_add_u32 s56, s56, {FOB_OFF:#x}")
    a("v_lshlrev_b32 v154, 7, v0")
    a("s_lshl_b32 s57, s57, 10")
    a(f"s_add_u32 s57, s57, {OFB:#x}")
    a("s_barrier")
    stamp(a, 6)
    a(f"ds_read_b128 {vr(Q0,4)}, v46")
    a(f"ds_read_b128 {vr(Q1,4)}, v46 offset:1024")
    a(f"ds_read_b128 {vr(KF,4)}, v47")
    a(f"ds_read_b128 {vr(KF+4,4)}, v47 offset:1024")
    a("s_waitcnt lgkmcnt(0)")
    mfma(a, SB, KF, Q0, 0)
    mfma(a, SB, KF + 4, Q1)
    a(f"ds_read_b128 {vr(KF,4)}, v{VCUR}")
    a(f"ds_read_b128 {vr(KF+4,4)}, v{VCUR} offset:1024")
    a("s_nop 15")
    max16(a, T0, SB)
    xhalf_max(a, T0, T1)
    a(f"v_add_f32 v{T0}, {f32bits(M_OFF):#x}, v{T0}")
    for r in range(16):
        a(f"v_sub_f32 v{CM+r}, 0, v{T0}")
    a("s_waitcnt lgkmcnt(0)")
    a("s_nop 0")
    mfma(a, SA, KF, Q0, CM)
    mfma(a, SA, KF + 4, Q1)
    a(f"ds_read_b128 {vr(KF,4)}, v{VCUR} offset:4096")
    a(f"ds_read_b128 {vr(KF+4,4)}, v{VCUR} offset:5120")
    a(f"ds_read_b128 {vr(VF,4)}, v{VCUR} offset:2048")
    a("s_mov_b32 s54, 0")
    a("s_nop 15")

    OREG = [OFR + 4 * i for i in range(8)] + [16 + 4 * i for i in range(8)]

    def o_loads(lo, hi):
        for i in range(lo, hi):
            so = (58, 59, 61, 63)[i // 4]
            a(f"buffer_load_dwordx4 {vr(OREG[i],4)}, v1, {WS}, s{so} offen offset:{(i%4)*1024} sc1")

    a(f"s_cmp_ge_u32 s2, 224")
    a("s_cselect_b32 s55, 9, 7")
    a(f"s_cmp_eq_u32 s{G}, 1")
    a("s_cselect_b32 s55, 9, s55")

    def step(j, sc, sn):
        PA = PA_ if j % 2 == 0 else PB_
        PB = PB_ if j % 2 == 0 else PA_
        VB = VF + 4
        if j == 2:
            a("s_waitcnt vmcnt(0)")
            a("s_barrier")
            a("s_cmp_eq_u32 s54, s55")
            a("s_cbranch_scc1 C_OA1")
            a.label("C_OA1_BACK")
        a("s_waitcnt lgkmcnt(1)")
        mfma(a, sn, KF, Q0, CM)
        for r in range(0, 4):
            a(f"v_exp_f32 v{sc+r}, v{sc+r}")
        mfma(a, sn, KF + 4, Q1)
        kb, ko = (VCUR, (j + 2) * 4096) if j + 2 < 4 else (VNXT, (j + 2 - 4) * 4096)
        a(f"ds_read_b128 {vr(KF,4)}, v{kb} offset:{ko}")
        a(f"ds_read_b128 {vr(KF+4,4)}, v{kb} offset:{ko+1024}")
        for r in range(4, 8):
            a(f"v_exp_f32 v{sc+r}, v{sc+r}")
        a(f"v_cvt_pk_bf16_f32 v{PA+0}, v{sc+0}, v{sc+1}")
        a(f"v_cvt_pk_bf16_f32 v{PA+1}, v{sc+2}, v{sc+3}")
        mfma(a, O, VB, PB + 4)
        a(f"ds_read_b128 {vr(VB,4)}, v{VCUR} offset:{j*4096+3072}")
        for r in range(8, 12):
            a(f"v_exp_f32 v{sc+r}, v{sc+r}")
        a(f"v_cvt_pk_bf16_f32 v{PA+2}, v{sc+4}, v{sc+5}")
        a(f"v_cvt_pk_bf16_f32 v{PA+3}, v{sc+6}, v{sc+7}")
        for r in range(12, 14):
            a(f"v_exp_f32 v{sc+r}, v{sc+r}")
        a("s_waitcnt lgkmcnt(3)")
        mfma(a, O, VF, PA)
        vb, vo = (VCUR, (j + 1) * 4096 + 2048) if j + 1 < 4 else (VNXT, 2048)
        a(f"ds_read_b128 {vr(VF,4)}, v{vb} offset:{vo}")
        for r in range(14, 16):
            a(f"v_exp_f32 v{sc+r}, v{sc+r}")
        for q in range(4, 8):
            a(f"v_cvt_pk_bf16_f32 v{PA+q}, v{sc+2*q}, v{sc+2*q+1}")

    a.label("C_LOOP")
    step(0, SA, SB)
    step(1, SB, SA)
    step(2, SA, SB)
    step(3, SB, SA)
    a(f"v_mov_b32 v{VCUR}, v{VNXT}")
    a(f"v_add_u32 v{VNXT}, {SLOT}, v{VNXT}")
    a(f"v_and_b32 v{VNXT}, {4*SLOT-1:#x}, v{VNXT}")
    a("s_add_u32 s54, s54, 1")
    a("s_cmp_lt_u32 s54, 8")
    a("s_cbranch_scc1 C_LOOP")
    a("s_waitcnt lgkmcnt(0)")
    mfma(a, O, VF + 4, PB_ + 4)
    stamp(a, 7)
    a("s_barrier")
    a("s_nop 2")
    a("s_nop 13")
    a(f"s_cmp_eq_u32 s{G}, 1")
    a("s_cbranch_scc1 C_G1")
    a(f"ds_write_b128 v{VX1}, {vr(O+8,4)}")
    a(f"ds_write_b128 v{VX1}, {vr(O+12,4)} offset:1024")
    a("s_waitcnt lgkmcnt(0)")
    a("s_barrier")
    a(f"ds_read_b128 {vr(SA,4)}, v{VX1} offset:2048")
    a(f"ds_read_b128 {vr(SA+4,4)}, v{VX1} offset:3072")
    a(f"ds_read_b32 v{T0}, v{VX2}")
    a("s_waitcnt lgkmcnt(0)")
    a(f"v_add_f32 v{T0}, v{T0}, v{O+12}")
    for r in range(8):
        a(f"v_add_f32 v{SA+r}, v{SA+r}, v{O+r}")
    a("s_branch C_FIN")
    a.label("C_G1")
    a(f"ds_write_b128 v{VX1}, {vr(O,4)} offset:2048")
    a(f"ds_write_b128 v{VX1}, {vr(O+4,4)} offset:3072")
    a(f"ds_write_b32 v{VX2}, v{O+12}")
    a("s_waitcnt lgkmcnt(0)")
    a("s_barrier")
    a(f"ds_read_b128 {vr(SA,4)}, v{VX1}")
    a(f"ds_read_b128 {vr(SA+4,4)}, v{VX1} offset:1024")
    a("s_waitcnt lgkmcnt(0)")
    for r in range(8):
        a(f"v_add_f32 v{SA+r}, v{SA+r}, v{O+8+r}")
    a(f"v_mov_b32 v{T0}, v{SA+4}")
    a.label("C_FIN")
    a(f"v_mov_b32 v{T1}, v{T0}")
    a("s_nop 1")
    a(f"v_permlane32_swap_b32 v{T0}, v{T1}")
    a("s_nop 1")
    a(f"v_mul_f32 v{T0}, 0, v{T1}")
    for r in range(8):
        a(f"v_fma_f32 v{T0}, v{SA+r}, 0, v{T0}")
    a(f"v_cmp_u_f32 vcc, v{T0}, v{T0}")
    a("s_nop 4")
    a("s_cbranch_vccnz C_FALLBACK")
    a.label("C_STORE")
    a(f"v_rcp_f32 v{T1}, v{T1}")
    a("s_nop 0")
    for r in range(8):
        a(f"v_mul_f32 v{SA+r}, v{SA+r}, v{T1}")
    for j in range(4):
        a(f"v_cvt_pk_bf16_f32 v{4+j}, v{SA+2*j}, v{SA+2*j+1}")
    a(f"s_cmp_eq_u32 s{G}, 0")
    a("s_cbranch_scc1 C_NOPAD")
    a("s_mov_b32 exec_lo, 0")
    a("v_mov_b32 v6, 0")
    a("v_mov_b32 v7, 0")
    a("s_mov_b32 exec_lo, -1")
    a.label("C_NOPAD")
    a(f"buffer_store_dwordx4 v[4:7], v1, {WS}, s57 offen sc1")
    a("s_barrier")
    stamp(a, 8)
    WOF, PACC = 48, 80
    a("s_cmp_ge_u32 s2, 224")
    a("s_cbranch_scc0 C_PROJ")
    a("s_waitcnt vmcnt(0)")
    fob_store(a)
    a("s_branch C_DONE")
    a.label("C_PROJ")
    OSC = {0: "", 1: " sc1", 2: " nt"}[OPT["outsc"]]

    def wo_read(s):
        hd, f = s // 2, s % 2
        for nt, b in enumerate((VW0, VW1)):
            for t in range(2):
                off = (28 * hd + 16 * f + 8 * t) * 128
                a(f"ds_read_b64_tr_b16 {vr(WOF+8*(s%4)+4*nt+2*t,2)}, v{b} offset:{off}")

    a(f"s_cmp_eq_u32 s{G}, 1")
    a("s_cbranch_scc1 C_PB")
    for s_ in range(4):
        wo_read(s_)
    a("s_waitcnt vmcnt(0)")
    fob_store(a)
    o_loads(8, 16)
    a("s_branch C_PJ")
    a.label("C_PB")
    for s_ in range(4):
        wo_read(s_)
    a("s_waitcnt vmcnt(0)")
    fob_store(a)
    stamp(a, 9)
    gpoll(a, VFOB, 0xffff, 0, FU, sleep=OPT['fsl'])
    stamp(a, 10)
    o_loads(0, 16)
    a.label("C_PJ")
    for s_ in range(16):
        lg = min(12, 4 * (15 - s_)) if s_ < 13 else 4 * (15 - s_)
        a(f"s_waitcnt vmcnt({15-s_}) lgkmcnt({lg})")
        for nt in range(2):
            mfma(a, PACC + 16 * nt, WOF + 8 * (s_ % 4) + 4 * nt, OREG[s_], 0 if s_ == 0 else None)
        if s_ + 4 < 16:
            wo_read(s_ + 4)
    stamp(a, 11)
    a("s_nop 15")
    a(f"s_cmp_eq_u32 s{KQ}, 0")
    a("s_cbranch_scc1 C_KH0")
    for q in range(4):
        a(f"ds_write_b128 v{VEX}, {vr(PACC+4*q,4)} offset:{q*1024}")
    for r in range(16):
        a(f"v_mov_b32 v{PACC+r}, v{PACC+16+r}")
    a("s_branch C_KHJ")
    a.label("C_KH0")
    for q in range(4):
        a(f"ds_write_b128 v{VEX}, {vr(PACC+16+4*q,4)} offset:{q*1024}")
    a.label("C_KHJ")
    a("s_waitcnt lgkmcnt(0)")
    a("s_barrier")
    for q in range(4):
        a(f"ds_read_b128 {vr(PACC+16+4*q,4)}, v{VOB} offset:{q*1024}")
    for q in range(4):
        a(f"s_waitcnt lgkmcnt({3-q})")
        for r in range(4 * q, 4 * q + 4):
            a(f"v_add_f32 v{PACC+r}, v{PACC+r}, v{PACC+16+r}")
    for j in range(8):
        a(f"v_cvt_pk_bf16_f32 v{8+j}, v{PACC+2*j}, v{PACC+2*j+1}")
    a("s_nop 1")
    a("v_permlane32_swap_b32 v8, v10")
    a("v_permlane32_swap_b32 v9, v11")
    a("v_permlane32_swap_b32 v12, v14")
    a("v_permlane32_swap_b32 v13, v15")
    a("s_nop 1")
    a(f"buffer_store_dwordx4 v[8:11], v{VOA}, s[36:39], s60 offen{OSC}")
    a(f"buffer_store_dwordx4 v[12:15], v{VOA}, s[36:39], s60 offen offset:32{OSC}")
    a(f"s_or_b32 s3, s2, s{W_}")
    a("s_cmp_lg_u32 s3, 0")
    a("s_cbranch_scc1 C_DONE")
    a(f"s_mov_b32 s3, {FL:#x}")
    flag_store(a, 3)
    a.label("C_DONE")
    stamp(a, 12)
    if STAMP:
        a("s_waitcnt vmcnt(0)")
    stamp(a, 13)
    stamp(a, 14, True)
    stamp_flush(a, 15)
    a("s_endpgm")

    a.label("C_OA1")
    o_loads(0, 8)
    a("s_branch C_OA1_BACK")

    a.label("C_FALLBACK")
    a(f"s_lshl_b32 s62, s{H_}, 18")
    a(f"s_add_u32 s62, s62, {KVB:#x}")
    a(f"s_mov_b32 s3, {NEG_BIG:#x}")
    a(f"v_mov_b32 v{T0}, s3")
    a("s_mov_b32 s55, 0")
    a("s_mov_b32 s3, s62")
    a.label("C_FB1")
    a(f"buffer_load_dwordx4 {vr(KF,4)}, v1, {WS}, s3 offen sc1")
    a(f"buffer_load_dwordx4 {vr(KF+4,4)}, v1, {WS}, s3 offen offset:1024 sc1")
    a("s_waitcnt vmcnt(0)")
    mfma(a, SB, KF, Q0, 0)
    mfma(a, SB, KF + 4, Q1)
    a("s_nop 15")
    a("s_nop 3")
    max16(a, T1, SB, extra=[T0])
    a(f"v_mov_b32 v{T0}, v{T1}")
    a("s_add_u32 s3, s3, 4096")
    a("s_add_u32 s55, s55, 1")
    a("s_cmp_lt_u32 s55, 64")
    a("s_cbranch_scc1 C_FB1")
    xhalf_max(a, T0, T1)
    for r in range(16):
        a(f"v_sub_f32 v{CM+r}, 0, v{T0}")
    for r in range(16):
        a(f"v_mov_b32 v{O+r}, 0")
    a("s_mov_b32 s55, 0")
    a("s_mov_b32 s3, s62")
    a.label("C_FB2")
    a(f"buffer_load_dwordx4 {vr(KF,4)}, v1, {WS}, s3 offen sc1")
    a(f"buffer_load_dwordx4 {vr(KF+4,4)}, v1, {WS}, s3 offen offset:1024 sc1")
    a(f"buffer_load_dwordx4 {vr(VF,4)}, v1, {WS}, s3 offen offset:2048 sc1")
    a(f"buffer_load_dwordx4 {vr(VF+4,4)}, v1, {WS}, s3 offen offset:3072 sc1")
    a("s_waitcnt vmcnt(0)")
    mfma(a, SB, KF, Q0, CM)
    mfma(a, SB, KF + 4, Q1)
    a("s_nop 15")
    a("s_nop 3")
    for r in range(16):
        a(f"v_exp_f32 v{SB+r}, v{SB+r}")
    a("s_nop 0")
    for q in range(8):
        a(f"v_cvt_pk_bf16_f32 v{PA_+q}, v{SB+2*q}, v{SB+2*q+1}")
    a("s_nop 1")
    mfma(a, O, VF, PA_)
    mfma(a, O, VF + 4, PA_ + 4)
    a("s_add_u32 s3, s3, 4096")
    a("s_add_u32 s55, s55, 1")
    a("s_cmp_lt_u32 s55, 64")
    a("s_cbranch_scc1 C_FB2")
    a("s_nop 15")
    a("s_nop 3")
    a(f"v_mov_b32 v{T0}, v{O+12}")
    a(f"v_mov_b32 v{T1}, v{O+12}")
    a("s_nop 1")
    a(f"v_permlane32_swap_b32 v{T0}, v{T1}")
    a(f"s_cmp_eq_u32 s{G}, 0")
    a("s_cbranch_scc1 C_FB3")
    for r in range(8):
        a(f"v_mov_b32 v{O+r}, v{O+8+r}")
    a.label("C_FB3")
    for r in range(8):
        a(f"v_mov_b32 v{SA+r}, v{O+r}")
    a("s_branch C_STORE")


def gen_helper(a):
    E, CC, XS, WSO, LX, LW, SL, N = 48, 49, 50, 51, 52, 53, 54, 55
    VFULL, VCNT, TMP = 163, 162, 144
    a("s_setprio 3")
    a(f"s_sub_u32 s{E}, s{W_}, 8")
    a("v_lshrrev_b32 v2, 3, v0")
    a("v_and_b32 v3, 7, v0")
    a("v_lshrrev_b32 v12, 4, v0")
    for i in range(4):
        a(f"v_add_u32 v13, {4*i}, v12")
        a("v_and_b32 v13, 7, v13")
        a("v_xor_b32 v13, v13, v3")
        a(f"v_add_u32 v14, {8*i}, v2")
        a(f"v_mul_u32_u24 v{8+i}, 896, v14")
        a(f"v_lshl_add_u32 v{4+i}, v13, 4, v{8+i}")
    a("s_mov_b32 s3, 5462")
    for i in range(3):
        a(f"v_add_u32 v15, {64*i}, v0")
        a("v_mul_lo_u32 v16, v15, s3")
        a("v_lshrrev_b32 v16, 16, v16")
        a("v_mul_u32_u24 v17, 12, v16")
        a("v_sub_u32 v15, v15, v17")
        a("v_min_u32 v15, 10, v15")
        a("v_mul_u32_u24 v16, 2688, v16")
        a(f"v_lshl_add_u32 v{12+i}, v15, 4, v16")
    a(f"s_lshl_b32 s{XS}, s{M_}, 2")
    a(f"s_add_u32 s{XS}, s{XS}, s{E}")
    a(f"s_mul_i32 s{XS}, s{XS}, {32*896}")
    a(f"s_mul_i32 s{WSO}, s{TR}, 168")
    a(f"s_andn2_b32 s{WSO}, s{WSO}, 15")
    a(f"s_mul_i32 s3, s{E}, {16*2688}")
    a(f"s_add_u32 s{WSO}, s{WSO}, s3")
    a(f"s_lshl_b32 s{LX}, s{E}, 12")
    a(f"s_mul_i32 s{LW}, s{E}, 3072")
    a(f"s_add_u32 s{LW}, s{LW}, 16384")
    a(f"s_lshl_b32 s{CC}, s{TR}, 1")
    a(f"s_add_u32 s{CC}, s{CC}, s{M_}")
    a(f"s_mul_i32 s3, s{CC}, 37")
    a("s_lshr_b32 s3, s3, 8")
    a("s_mul_i32 s3, s3, 7")
    a(f"s_sub_u32 s{CC}, s{CC}, s3")
    a(f"s_mov_b32 s{SL}, {2*GS}")
    a(f"s_mov_b32 s{N}, 0")
    a("s_waitcnt lgkmcnt(0)")
    stamp(a, 0)
    stamp(a, 1, True)
    srd(a, 28, 10, X_BYTES)
    srd(a, 32, 12, W_BYTES)

    def gemm_issue():
        a(f"s_lshl_b32 s56, s{CC}, 7")
        a(f"s_add_u32 s56, s56, s{XS}")
        a(f"s_mul_i32 s57, s{CC}, {64*2688}")
        a(f"s_add_u32 s57, s57, s{WSO}")
        a(f"s_add_u32 s58, s{SL}, s{LX}")
        a(f"s_add_u32 s59, s{SL}, s{LW}")
        for i in range(4):
            a(f"s_add_u32 m0, s58, {i*1024}")
            a("s_nop 0")
            a(f"buffer_load_dwordx4 v{4+i}, s[28:31], s56 offen lds")
        for i in range(3):
            a(f"s_add_u32 m0, s59, {i*1024}")
            a("s_nop 0")
            a(f"buffer_load_dwordx4 v{12+i}, s[32:35], s57 offen lds")
        a(f"s_add_u32 s{CC}, s{CC}, 1")
        a(f"s_cmp_eq_u32 s{CC}, 7")
        a(f"s_cselect_b32 s{CC}, 0, s{CC}")
        a(f"s_add_u32 s{SL}, s{SL}, {GS}")
        a(f"s_cmp_eq_u32 s{SL}, {NGS*GS}")
        a(f"s_cselect_b32 s{SL}, 0, s{SL}")

    def publish(val):
        a(f"v_mov_b32 v{VCNT}, {val}")
        a(f"ds_write_b32 v{VFULL}, v{VCNT}")

    def flag_addr(dst, shead, base):
        a(f"v_lshrrev_b32 v{dst}, 4, v0")
        a(f"v_lshlrev_b32 v{dst}, 4, v{dst}")
        a(f"v_add_u32 v{dst}, s{shead}, v{dst}")
        a(f"v_mul_u32_u24 v{dst}, 171, v{dst}")
        a(f"v_lshrrev_b32 v{dst}, 9, v{dst}")
        a(f"v_min_u32 v{dst}, 15, v{dst}")
        a(f"v_lshlrev_b32 v{dst}, 7, v{dst}")
        a("v_and_b32 v19, 15, v0")
        a(f"v_lshl_add_u32 v{dst}, v19, 2, v{dst}")
        a(f"v_add_u32 v{dst}, {base:#x}, v{dst}")

    def shared_gpoll(k, vaddr, mlo, mhi, sleep=2):
        L = a.new("SG")
        a(f"s_cmp_lg_u32 s{E}, 0")
        a(f"s_cbranch_scc1 {L}")
        gpoll(a, vaddr, mlo, mhi, 19, sleep=sleep)
        a(f"v_mov_b32 v{VCNT}, 1")
        a(f"ds_write_b32 v{VSY}, v{VCNT} offset:{96+4*k}")
        a(f"s_branch {L}_J")
        a.label(L)
        lpoll(a, 96 + 4 * k, 1, 1, TMP, sleep=sleep)
        a.label(L + "_J")

    def switch_a():
        srd(a, 28, 4, X_BYTES)
        srd(a, 32, 6, W_BYTES)
        for i in range(4):
            a(f"v_add_u32 v{4+i}, v{4+i}, v{8+i}")
        a(f"s_lshl_b32 s{XS}, s{M_}, 7")
        a(f"s_lshr_b32 s3, s{E}, 1")
        a("s_lshl_b32 s3, s3, 6")
        a(f"s_add_u32 s{XS}, s{XS}, s3")
        a(f"s_and_b32 s3, s{E}, 1")
        a(f"s_add_u32 s{XS}, s{XS}, s3")
        a(f"s_mul_i32 s{XS}, s{XS}, 896")
        a(f"s_add_u32 s{TR}, s{TR}, {OPT['trs']}")
        a(f"s_and_b32 s{TR}, s{TR}, 15")
        a(f"s_mul_i32 s{WSO}, s{TR}, 168")
        a(f"s_andn2_b32 s{WSO}, s{WSO}, 15")
        a(f"s_mul_i32 s3, s{E}, {16*2688}")
        a(f"s_add_u32 s{WSO}, s{WSO}, s3")

    gemm_issue()
    common_late(a)
    a(f"s_lshl_b32 s3, s{E}, 2")
    a(f"s_add_u32 s3, s3, {SY:#x}")
    a(f"v_mov_b32 v{VFULL}, s3")
    flag_addr(18, H_, FB_OFF)
    a(f"s_lshl_b32 s61, s{TR}, 7")
    a(f"s_lshl_b32 s3, s{M_}, 2")
    a("s_add_u32 s61, s61, s3")
    a(f"s_add_u32 s61, s61, {FB_OFF:#x}")
    a(f"s_mov_b32 s{N}, 1")
    if ASYNC:
        a("s_barrier")
    a.label("H_GL")
    if ASYNC:
        a(f"s_cmp_lt_u32 s{N}, {NGS}")
        a("s_cbranch_scc1 H_NOFREE")
        a(f"s_sub_u32 s60, s{N}, {NGS-1}")
        lpoll(a, 16, 8, "s60", TMP, sleep=0)
        a.label("H_NOFREE")
    else:
        a(f"s_cmp_lt_u32 s{N}, 2")
        a("s_cbranch_scc1 H_NOBAR")
        a(f"s_cmp_eq_u32 s{N}, 3")
        a("s_cbranch_scc1 H_NOBAR")
        a(f"s_cmp_eq_u32 s{N}, 2")
        a("s_cbranch_scc1 H_W7")
        a("s_waitcnt vmcnt(14)")
        a("s_branch H_W")
        a.label("H_W7")
        a("s_waitcnt vmcnt(7)")
        a.label("H_W")
        a("s_barrier")
        a(f"s_cmp_lg_u32 s{N}, {OPT['fbn']+4}")
        a("s_cbranch_scc1 H_NOBAR")
        a(f"s_cmp_lg_u32 s{E}, 0")
        a("s_cbranch_scc1 H_NOBAR")
        flag_store(a, 61)
        a.label("H_NOBAR")
    a(f"s_cmp_lg_u32 s{N}, 7")
    a("s_cbranch_scc1 H_NOSW")
    switch_a()
    a.label("H_NOSW")
    gemm_issue()
    if ASYNC:
        a(f"s_cmp_lt_u32 s{N}, 2")
        a("s_cbranch_scc1 H_NOPUB")
        a("s_waitcnt vmcnt(14)")
        a(f"s_sub_u32 s60, s{N}, 1")
        publish("s60")
        lstamp(a, "s60")
        a.label("H_NOPUB")
    else:
        a(f"s_cmp_lg_u32 s{N}, 3")
        a("s_cbranch_scc1 H_NOT3")
        tag_finish(a)
        a.label("H_NOT3")
    a(f"s_add_u32 s{N}, s{N}, 1")
    a(f"s_cmp_lt_u32 s{N}, 14")
    a("s_cbranch_scc1 H_GL")
    if ASYNC:
        a("s_waitcnt vmcnt(7)")
        publish(13)
        tag_finish(a)
        a("s_waitcnt vmcnt(0)")
        publish(14)
    else:
        a("s_waitcnt vmcnt(14)")
        a("s_barrier")
        a("s_waitcnt vmcnt(7)")
        a("s_barrier")
        a("s_waitcnt vmcnt(0)")
        a("s_barrier")
    stamp(a, 4)
    shared_gpoll(0, 18, 0xffffffff, 0xffff, sleep=1)
    stamp(a, 5)
    KVS = 50
    a(f"s_lshl_b32 s{KVS}, s{H_}, 18")
    a(f"s_add_u32 s{KVS}, s{KVS}, {KVB:#x}")
    a(f"s_lshl_b32 s{LX}, s{E}, 13")
    a(f"s_add_u32 s{KVS}, s{KVS}, s{LX}")

    def kv_issue(c):
        slot = (2 + c) % 4
        a(f"s_add_u32 s56, s{QBK}, {c}")
        a("s_and_b32 s56, s56, 7")
        a("s_lshl_b32 s56, s56, 15")
        a(f"s_add_u32 s56, s56, s{KVS}")
        a("s_add_u32 s57, s56, 4096")
        for half in range(2):
            a(f"s_add_u32 m0, s{LX}, {slot*SLOT + half*4096}")
            a("s_nop 0")
            for i in range(4):
                a(f"buffer_load_dwordx4 v1, {WS}, s{56+half} offen offset:{i*1024} sc1 lds")

    a(f"s_lshl_b32 s56, s{H_}, 6")
    a(f"s_lshl_b32 s3, s{QBK}, 2")
    a("s_add_u32 s56, s56, s3")
    a(f"s_add_u32 s56, s56, s{E}")
    a("s_lshl_b32 s56, s56, 11")
    a(f"s_lshl_b32 s3, s{E}, 11")
    a(f"s_add_u32 m0, s3, {QLDS}")
    a("s_nop 0")
    for i in range(2):
        a(f"buffer_load_dwordx4 v1, {WS}, s56 offen offset:{i*1024} sc1 lds")
    if ASYNC:
        lpoll(a, 16, 8, 12, TMP, sleep=0)
    kv_issue(0)
    HA, TA, TT_ = H_, 60, 63
    a(f"s_lshl_b32 s{TA}, s{QBK}, 2")
    a(f"s_add_u32 s{TA}, s{TA}, s{E}")
    a(f"s_and_b32 s{TT_}, s{TA}, 31")
    a(f"v_add_u32 v18, {FA_OFF-FB_OFF:#x}, v18")
    a(f"s_lshl_b32 s61, s{TR}, 7")
    a(f"s_lshl_b32 s3, s{M_}, 2")
    a("s_add_u32 s61, s61, s3")
    a(f"s_add_u32 s61, s61, {FA_OFF:#x}")
    a("v_lshrrev_b32 v20, 3, v0")
    a("v_mul_u32_u24 v20, 896, v20")
    a("v_and_b32 v19, 7, v0")
    a("v_bfe_u32 v21, v0, 4, 1")
    a("v_lshlrev_b32 v21, 2, v21")
    a("v_xor_b32 v19, v19, v21")
    a("v_lshl_add_u32 v20, v19, 4, v20")
    AQ, AKC, AVC, AKP, AVP = 24, 32, 40, 48, 56
    CCR, CPR, AO, AP, APP, T0, T1 = 64, 80, 96, 112, 120, 124, 125
    a(f"s_mov_b32 s3, {NEG_BIG:#x}")
    for r in range(16):
        a(f"v_mov_b32 v{CCR+r}, s3")
    for r in range(12, 16):
        a(f"v_mov_b32 v{CPR+r}, s3")
    for r in range(12):
        a(f"v_mov_b32 v{CPR+r}, 0")
    for r in range(16):
        c = (r & 3) + 8 * (r >> 2)
        a(f"s_mov_b32 exec_lo, {(0xFF << c) & 0xFFFFFFFF:#x}")
        a(f"s_mov_b32 exec_hi, {(0xFF << (c + 4)) & 0xFFFFFFFF:#x}")
        a(f"v_mov_b32 v{CCR+r}, 0")
    a(f"s_cmp_eq_u32 s{TT_}, 0")
    a("s_cbranch_scc1 H_NOPREV")
    for r in range(12, 16):
        a(f"s_mov_b32 exec_lo, {(1 << (r & 3)) - 1:#x}")
        a(f"s_mov_b32 exec_hi, {(1 << ((r & 3) + 4)) - 1:#x}")
        a(f"v_mov_b32 v{CPR+r}, 0")
    a.label("H_NOPREV")
    a("s_mov_b64 exec, -1")
    srd(a, 28, 14, WO_BYTES)
    srd(a, 32, 8, WO_BYTES)
    WOS = 51
    a(f"s_mul_i32 s{WOS}, s{E}, {64*896}")
    a(f"s_min_u32 s3, s{NB}, 6")
    a("s_lshl_b32 s3, s3, 7")
    a(f"s_add_u32 s{WOS}, s{WOS}, s3")

    def wo_issue(sr, base, row0, n=8):
        for i in range(n):
            a(f"s_add_u32 s56, s{WOS}, {(row0 + i*8)*896}")
            a(f"s_add_u32 m0, s{LX}, {base + i*1024}")
            a("s_nop 0")
            a(f"buffer_load_dwordx4 v20, {sr}, s56 offen lds")

    a("s_waitcnt vmcnt(0)")
    a("s_barrier")
    stamp(a, 6)
    kv_issue(1)
    kv_issue(2)
    a("s_waitcnt vmcnt(8)")
    a("s_barrier")
    kv_issue(3)
    a(f"s_cmp_lg_u32 s{E}, 0")
    a("s_cbranch_scc1 H_NOFA")
    flag_store(a, 61)
    a.label("H_NOFA")
    for c in (4, 5, 6):
        a("s_waitcnt vmcnt(8)")
        a("s_barrier")
        kv_issue(c)
        if c == 4:
            wo_issue("s[32:35]", MREG, 224, 5)
            a(f"s_cmp_eq_u32 s{E}, 3")
            a("s_cbranch_scc1 H_WA3")
            for i in range(5, 8):
                a(f"s_add_u32 s56, s{WOS}, {(224 + i*8)*896}")
                a(f"s_add_u32 m0, s{LX}, {MREG + i*1024}")
                a("s_nop 0")
                a("buffer_load_dwordx4 v20, s[32:35], s56 offen lds")
            a.label("H_WA3")
    shared_gpoll(1, 18, 0xffffffff, 0xffff, sleep=2)
    a("s_waitcnt vmcnt(8)")
    a(f"s_lshl_b32 s3, s{HA}, 6")
    a(f"s_add_u32 s3, s3, s{TA}")
    a("s_lshl_b32 s57, s3, 11")
    a(f"s_add_u32 s57, s57, {QA:#x}")
    a("s_lshl_b32 s58, s3, 12")
    a(f"s_add_u32 s58, s58, {KVA:#x}")
    a("s_sub_u32 s59, s58, 4096")
    a(f"s_cmp_eq_u32 s{TT_}, 0")
    a("s_cselect_b32 s59, s58, s59")
    for (reg, so, off) in ((AQ, 57, 0), (AQ + 4, 57, 1024), (AKC, 58, 0), (AKC + 4, 58, 1024), (AKP, 59, 0),
                           (AKP + 4, 59, 1024), (AVC, 58, 2048), (AVC + 4, 58, 3072), (AVP, 59, 3072)):
        a(f"buffer_load_dwordx4 {vr(reg,4)}, v1, {WS}, s{so} offen offset:{off} sc1")
    a("s_barrier")
    kv_issue(7)
    a("s_waitcnt vmcnt(11)")
    mfma(a, CCR, AKC, AQ)
    mfma(a, CPR, AKP, AQ)
    mfma(a, CCR, AKC + 4, AQ + 4)
    mfma(a, CPR, AKP + 4, AQ + 4)
    a("s_nop 15")
    a("s_nop 3")
    max16(a, T0, CCR, extra=[CPR + 12, CPR + 13, CPR + 14, CPR + 15])
    xhalf_max(a, T0, T1)
    rs = list(range(CCR, CCR + 16)) + list(range(CPR + 12, CPR + 16))
    for r in rs:
        a(f"v_sub_f32 v{r}, v{r}, v{T0}")
    for r in rs:
        a(f"v_exp_f32 v{r}, v{r}")
    a("s_nop 0")
    for j in range(8):
        a(f"v_cvt_pk_bf16_f32 v{AP+j}, v{CCR+2*j}, v{CCR+2*j+1}")
    a(f"v_mov_b32 v{APP}, 0")
    a(f"v_mov_b32 v{APP+1}, 0")
    a(f"v_cvt_pk_bf16_f32 v{APP+2}, v{CPR+12}, v{CPR+13}")
    a(f"v_cvt_pk_bf16_f32 v{APP+3}, v{CPR+14}, v{CPR+15}")
    a("s_waitcnt vmcnt(8)")
    a("s_nop 0")
    mfma(a, AO, AVC, AP, 0)
    mfma(a, AO, AVC + 4, AP + 4)
    mfma(a, AO, AVP, APP)
    a("s_nop 15")
    a("s_nop 3")
    a(f"v_mov_b32 v{T0}, v{AO+12}")
    a(f"v_mov_b32 v{T1}, v{AO+12}")
    a("s_nop 1")
    a(f"v_permlane32_swap_b32 v{T0}, v{T1}")
    a("s_nop 1")
    a(f"v_rcp_f32 v{T1}, v{T1}")
    a("s_nop 0")
    for r in range(16):
        a(f"v_mul_f32 v{AO+r}, v{AO+r}, v{T1}")
    for j in range(8):
        a(f"v_cvt_pk_bf16_f32 v{AP+j}, v{AO+2*j}, v{AO+2*j+1}")
    a("s_mov_b32 exec_lo, 0")
    a(f"v_mov_b32 v{AP+6}, 0")
    a(f"v_mov_b32 v{AP+7}, 0")
    a("s_mov_b32 exec_lo, -1")
    a(f"s_lshl_b32 s57, s{TA}, 4")
    a(f"s_add_u32 s57, s57, s{HA}")
    a("s_lshl_b32 s57, s57, 11")
    a(f"s_add_u32 s57, s57, {OFA:#x}")
    a(f"buffer_store_dwordx4 {vr(AP,4)}, v1, {WS}, s57 offen sc1")
    a(f"buffer_store_dwordx4 {vr(AP+4,4)}, v1, {WS}, s57 offen offset:1024 sc1")
    a(f"s_lshl_b32 s3, s{TT_}, 7")
    a(f"s_lshr_b32 s58, s{TA}, 5")
    a("s_lshl_b32 s58, s58, 4")
    a(f"s_add_u32 s58, s58, s{HA}")
    a("s_lshl_b32 s58, s58, 2")
    a("s_add_u32 s58, s58, s3")
    a(f"s_add_u32 s58, s58, {FOA_OFF:#x}")
    a("s_barrier")
    a("s_waitcnt vmcnt(0)")
    flag_store(a, 58)
    a("s_cmp_ge_u32 s2, 224")
    a("s_cbranch_scc1 H_NOPROJ")
    a(f"s_lshl_b32 s3, s{MB}, 7")
    a(f"s_add_u32 s3, s3, {FOA_OFF:#x}")
    a("v_lshlrev_b32 v18, 2, v0")
    a("v_add_u32 v18, s3, v18")
    wo_issue("s[28:31]", 2 * SLOT, 0)
    a("s_barrier")
    wo_issue("s[28:31]", 3 * SLOT, 256)
    stamp(a, 7)
    shared_gpoll(2, 18, 0xffffffff, 0, sleep=2)
    stamp(a, 8)
    a("s_barrier")
    wo_issue("s[32:35]", 0, 0)
    a("s_waitcnt vmcnt(0)")
    a("s_barrier")
    a("s_branch H_DONE")
    a.label("H_NOPROJ")
    a("s_barrier")
    a("s_barrier")
    a("s_barrier")
    a.label("H_DONE")
    stamp(a, 13)
    stamp(a, 14, True)
    stamp_flush(a, 15)
    a("s_endpgm")


HEADER = """; Kernarg layout for this problem (72 bytes, ptrs only, base s[0:1]):
"""


def main():
    out = sys.argv[1]
    a = Asm()
    a.raw(HEADER.rstrip())
    a.raw(f"; @launch grid=(256,1,1) block=(768,1,1) lds={LDS_BYTES}")
    a.raw('.amdgcn_target "amdgcn-amd-amdhsa--gfx950"')
    gen(a)
    open(out, "w").write(a.text())


if __name__ == "__main__":
    main()
```

```python
import subprocess
from mblib import meta
def vr(a,n): return f"v[{a}:{a+n-1}]"
def mf(d,A,B,C=None):
    c = "0" if C==0 else vr(d if C is None else C,16)
    return f"v_mfma_f32_32x32x16_bf16 {vr(d,16)}, {vr(A,4)}, {vr(B,4)}, {c}"
def K(name, body, iters, nw, pre=""):
    return f"""
.globl {name}
.p2align 8
.type {name},@function
{name}:
    s_load_dwordx2 s[4:5], s[0:1], 0
    s_load_dwordx2 s[14:15], s[0:1], 8
    v_lshrrev_b32 v1, 6, v0
    v_and_b32 v6, 63, v0
    v_readfirstlane_b32 s6, v1
    v_lshlrev_b32 v6, 4, v6
    s_waitcnt lgkmcnt(0)
    s_mov_b32 s16, s14
    s_and_b32 s17, s15, 0xffff
    s_mov_b32 s18, 0x200000
    s_mov_b32 s19, 0x20000
    s_lshl_b32 s20, s6, 12
    s_mov_b32 m0, s20
    s_nop 0
    buffer_load_dwordx4 v6, s[16:19], s20 offen offset:0 lds
    buffer_load_dwordx4 v6, s[16:19], s20 offen offset:1024 lds
    buffer_load_dwordx4 v6, s[16:19], s20 offen offset:2048 lds
    buffer_load_dwordx4 v6, s[16:19], s20 offen offset:3072 lds
    s_add_u32 s21, s20, 0x10000
    buffer_load_dwordx4 v[8:11], v6, s[16:19], s21 offen
    buffer_load_dwordx4 v[12:15], v6, s[16:19], s21 offen offset:1024
    buffer_load_dwordx4 v[128:131], v6, s[16:19], s21 offen offset:2048
    buffer_load_dwordx4 v[132:135], v6, s[16:19], s21 offen offset:3072
""" + "\n".join(f"    v_mov_b32 v{i}, 0" for i in list(range(16,64))+list(range(80,128))+list(range(136,200))) + "\n" + "\n".join(f"    v_mov_b32 v{i}, 0xc2c80000" for i in range(64,80)) + f"""
{pre}
    s_lshr_b32 s22, s6, 2
    s_lshl_b32 s22, s22, 14
    v_add_u32 v6, s22, v6
    s_waitcnt vmcnt(0)
    s_sleep 127
    s_sleep 127
    s_barrier
    s_memtime s[8:9]
    s_memrealtime s[24:25]
    s_waitcnt lgkmcnt(0)
    s_mov_b32 s7, {iters}
L_{name}:
{body}
    s_sub_u32 s7, s7, 1
    s_cmp_lg_u32 s7, 0
    s_cbranch_scc1 L_{name}
    s_waitcnt lgkmcnt(0)
    s_memtime s[10:11]
    s_memrealtime s[26:27]
    s_waitcnt lgkmcnt(0)
    s_sub_u32 s10, s10, s8
    s_sub_u32 s26, s26, s24
    s_mul_i32 s12, s2, {nw}
    s_add_u32 s12, s12, s6
    s_lshl_b32 s12, s12, 3
    v_mov_b32 v4, s12
    v_mov_b32 v2, s10
    v_mov_b32 v3, s26
    global_store_dwordx2 v4, v[2:3], s[4:5]
    s_waitcnt vmcnt(0)
    s_endpgm
.section .rodata,"a"
.p2align 6
.amdhsa_kernel {name}
  .amdhsa_next_free_vgpr 200
  .amdhsa_next_free_sgpr 32
  .amdhsa_accum_offset 200
  .amdhsa_group_segment_fixed_size 0
  .amdhsa_kernarg_size 16
  .amdhsa_user_sgpr_count 2
  .amdhsa_user_sgpr_kernarg_segment_ptr 1
  .amdhsa_system_sgpr_workgroup_id_x 1
.end_amdhsa_kernel
.text
"""
Q0,Q1,KF,VF,P,O,CM,SA,SB=8,12,16,24,32,48,64,80,96
def step1(j,sc,sn,c0=False,bar=True):
    L=[]; a=L.append
    PA = P if j%2==0 else 112
    PB = 112 if j%2==0 else P
    VB = VF+4
    if j==2 and bar: a("s_barrier")
    a("s_waitcnt lgkmcnt(1)")
    a(mf(sn,KF,Q0,0 if c0 else CM))
    for r in range(0,4): a(f"v_exp_f32 v{sc+r}, v{sc+r}")
    a(mf(sn,KF+4,Q1))
    a(f"ds_read_b128 {vr(KF,4)}, v6 offset:{((j+2)%4)*4096}")
    a(f"ds_read_b128 {vr(KF+4,4)}, v6 offset:{((j+2)%4)*4096+1024}")
    for r in range(4,8): a(f"v_exp_f32 v{sc+r}, v{sc+r}")
    a(f"v_cvt_pk_bf16_f32 v{PA+0}, v{sc+0}, v{sc+1}")
    a(f"v_cvt_pk_bf16_f32 v{PA+1}, v{sc+2}, v{sc+3}")
    a(mf(O,VB,PB+4))
    a(f"ds_read_b128 {vr(VB,4)}, v6 offset:{j*4096+3072}")
    for r in range(8,12): a(f"v_exp_f32 v{sc+r}, v{sc+r}")
    a(f"v_cvt_pk_bf16_f32 v{PA+2}, v{sc+4}, v{sc+5}")
    a(f"v_cvt_pk_bf16_f32 v{PA+3}, v{sc+6}, v{sc+7}")
    for r in range(12,14): a(f"v_exp_f32 v{sc+r}, v{sc+r}")
    a("s_waitcnt lgkmcnt(3)")
    a(mf(O,VF,PA))
    a(f"ds_read_b128 {vr(VF,4)}, v6 offset:{((j+1)%4)*4096+2048}")
    for r in range(14,16): a(f"v_exp_f32 v{sc+r}, v{sc+r}")
    for q in range(4,8): a(f"v_cvt_pk_bf16_f32 v{PA+q}, v{sc+2*q}, v{sc+2*q+1}")
    return L
def body1(**kw):
    L=[]
    for j in range(4): L+=step1(j, SA if j%2==0 else SB, SB if j%2==0 else SA, **kw)
    return "\n".join("    "+x for x in L)
def body2(bar=True):
    QA=(8,12); QB=(128,132); OA=48; OB=136; S=[80,96]; PP=[32,112]; K=[16,152]; V=[24,160]
    L=[]; a=L.append
    for un in range(4):
        t=un//2; isB=un%2
        sc=S[un%2]; sn=S[(un+1)%2]; PA=PP[un%2]; PB=PP[(un+1)%2]
        nt=((un+1)//2)%2; nB=(un+1)%2
        Qn=QB if nB else QA
        Oc=OB if isB else OA; Op=OA if isB else OB
        pt=((un-1)//2)%2
        if un==2 and bar: a("s_barrier")
        a("s_waitcnt lgkmcnt(0)" if nB==0 else "s_nop 0")
        a(mf(sn,K[nt],Qn[0],CM))
        for r in range(0,4): a(f"v_exp_f32 v{sc+r}, v{sc+r}")
        a(mf(sn,K[nt]+4,Qn[1]))
        if nB==1:
            a(f"ds_read_b128 {vr(K[1-nt],4)}, v6 offset:{(1-nt)*4096}")
            a(f"ds_read_b128 {vr(K[1-nt]+4,4)}, v6 offset:{(1-nt)*4096+1024}")
        for r in range(4,8): a(f"v_exp_f32 v{sc+r}, v{sc+r}")
        a(f"v_cvt_pk_bf16_f32 v{PA+0}, v{sc+0}, v{sc+1}")
        a(f"v_cvt_pk_bf16_f32 v{PA+1}, v{sc+2}, v{sc+3}")
        a(mf(Op,V[pt]+4,PB+4))
        if isB==0:
            a(f"ds_read_b128 {vr(V[1-t],4)}, v6 offset:{(1-t)*4096+2048}")
            a(f"ds_read_b128 {vr(V[1-t]+4,4)}, v6 offset:{(1-t)*4096+3072}")
        for r in range(8,12): a(f"v_exp_f32 v{sc+r}, v{sc+r}")
        a(f"v_cvt_pk_bf16_f32 v{PA+2}, v{sc+4}, v{sc+5}")
        a(f"v_cvt_pk_bf16_f32 v{PA+3}, v{sc+6}, v{sc+7}")
        for r in range(12,14): a(f"v_exp_f32 v{sc+r}, v{sc+r}")
        a(mf(Oc,V[t],PA))
        for r in range(14,16): a(f"v_exp_f32 v{sc+r}, v{sc+r}")
        for q in range(4,8): a(f"v_cvt_pk_bf16_f32 v{PA+q}, v{sc+2*q}, v{sc+2*q+1}")
    return "\n".join("    "+x for x in L)
out = '.amdgcn_target "amdgcn-amd-amdhsa--gfx950"\n.text\n'
names=[]
for nm,b,pre in (('base',body1(),""),('nobar',body1(bar=False),""),('c0',body1(c0=True),""),('q2',body2(),""),('q2nb',body2(bar=False),""),
             ('prio',body1(),"    s_cmp_ge_u32 s6, 4\n    s_cbranch_scc0 NP\n    s_setprio 1\nNP:")):
    n=f"{nm}_512"; out+=K(n,b,8,8,pre); names.append(n)
out+=meta(names)
open('mb12.s','w').write(out)
open('mb12.args','w').write(" ".join(f"{n}:512" for n in names))
subprocess.check_call(["clang","-x","assembler","-target","amdgcn-amd-amdhsa","-mcpu=gfx950",'mb12.s',"-o",'mb12.co'])
```
